```python
import torch

def _softmax(x, axis=-1):
    return torch.softmax(x, dim=axis)
def _gelu(x):
    return torch.nn.functional.gelu(x, approximate="tanh")
def _silu(x):
    return torch.nn.functional.silu(x)
def _sigmoid(x):
    return torch.sigmoid(x)
def _layernorm(x, axis=-1, eps=1e-5):
    m = x.mean(dim=axis, keepdim=True)
    v = x.var(dim=axis, keepdim=True, unbiased=False)
    return (x - m) / torch.sqrt(v + eps)
def _scatter_add(tgt, idx, src, axis=0):
    return tgt.clone().index_add_(axis, idx, src)
def _segment_sum(src, seg, n):
    out = torch.zeros((n,) + src.shape[1:], dtype=src.dtype)
    return out.index_add_(0, seg, src)
def _pad(x, pw):
    flat = tuple(v for pair in reversed(pw) for v in pair)
    return torch.nn.functional.pad(x, flat)

kernel_name = 'gated_mix__ssm_conv_h3__dense_activation_silu__prompt'

def setup_inputs():

    _w = (lambda a: (lambda t: t.to(torch.bfloat16) if t.is_floating_point() else t)(torch.as_tensor(a)))
    def _A_setup():
        B, S, D = 1, 2048, 640
        ks = 4
        return {
            "q": _w((lambda *s: torch.randn(*s, dtype=torch.bfloat16) * 0.05)(B, S, D)),
            "k": _w((lambda *s: torch.randn(*s, dtype=torch.bfloat16) * 0.2)(B, S, D)),
            "v": _w((lambda *s: torch.randn(*s, dtype=torch.bfloat16) * 0.2)(B, S, D)),
            "shift_k": _w((lambda *s: torch.randn(*s, dtype=torch.bfloat16) * 0.2)(D, ks) * 0.5),
            "ssm_k": _w((lambda *s: torch.randn(*s, dtype=torch.bfloat16) * 0.4)(D, S) * (1.0 / S ** 0.5)),
            "ssm_D": _w((lambda *s: torch.randn(*s, dtype=torch.bfloat16) * 0.2)(D)),
        }
    _A_in = _A_setup()

    def _B_setup():
        B, S, D, F = 1, 2048, 640, 1536
        return {
            "x": _w((lambda *s: torch.randn(*s, dtype=torch.bfloat16) * 0.05)(B, S, D)),
            "w1": _w((lambda *s: torch.randn(*s, dtype=torch.bfloat16) * 3.2)(D, F) * (D ** -0.5)),
            "w2": _w((lambda *s: torch.randn(*s, dtype=torch.bfloat16) * 0.05)(F, D) * (F ** -0.5)),
        }
    _B_in = _B_setup()

    return {
        "A_q": _A_in["q"],
        "A_k": _A_in["k"],
        "A_v": _A_in["v"],
        "A_shift_k": _A_in["shift_k"],
        "A_ssm_k": _A_in["ssm_k"],
        "A_ssm_D": _A_in["ssm_D"],
        "B_x": _B_in["x"],
        "B_w1": _B_in["w1"],
        "B_w2": _B_in["w2"],
        "gate_w": _w((lambda *s: torch.randn(*s, dtype=torch.bfloat16) * 0.05)(640) * 16.0),
    }

def reference(A_q, A_k, A_v, A_shift_k, A_ssm_k, A_ssm_D, B_x, B_w1, B_w2, gate_w):
    def _A_ref(q, k, v, shift_k, ssm_k, ssm_D):
        B, S, D = q.shape
        ks = shift_k.shape[-1]
        k_pad = _pad(k, ((0, 0), (ks - 1, 0), (0, 0)))
        k_shift = torch.zeros_like(k)
        for t in range(ks):
            k_shift = k_shift + k_pad[:, t:t + S, :] * shift_k[:, ks - 1 - t][None, None, :]
        kv = k_shift * v
        L = 2 * S
        kv_pad = _pad(kv, ((0, 0), (0, S), (0, 0)))
        kf_pad = _pad(ssm_k, ((0, 0), (0, S)))
        kv_f = (lambda x, axes=(-2,-1): torch.fft.rfft2(x.float(), dim=axes))(kv_pad[:, None, :, :], axes=(1, 2))
        kf_f = (lambda x, axes=(-2,-1): torch.fft.rfft2(x.float(), dim=axes))(kf_pad[:, None, :], axes=(1, 2))
        kf_f = (lambda x, *d: x.permute(*d))(kf_f, 1, 2, 0)
        y_f = kv_f * kf_f[None, :, :, :]
        y = (lambda x, s, axes=(-2,-1): torch.fft.irfft2(x, s=s, dim=axes).to(torch.bfloat16))(y_f, (1, L), axes=(1, 2))[:, 0, :S, :]
        y = y + kv * ssm_D[None, None, :]
        return q * y

    def _B_ref(x, w1, w2):
        h = torch.einsum("bsd,df->bsf", x, w1)
        h = _silu(h)
        out = torch.einsum("bsf,fd->bsd", h, w2)
        return out

    x = A_q
    g = _sigmoid((x * gate_w).sum(-1, keepdims=True))
    a = _A_ref(x, A_k, A_v, A_shift_k, A_ssm_k, A_ssm_D)
    b = _B_ref(x, B_w1, B_w2)
    return g * a + (1 - g) * b
```

```python
import re

REG_RE = re.compile(r"\b([vas])\[(\d+):(\d+)\]|\b([vas])(\d+)\b|\b(vcc|exec|m0|scc)\b|\b(vcc_lo|vcc_hi|exec_lo|exec_hi)\b")
TRANS = ("v_exp_f32", "v_log_f32", "v_rcp_f32", "v_rsq_f32", "v_sqrt_f32", "v_sin_f32", "v_cos_f32")


def regs_of(tok):
    out = set()
    for m in REG_RE.finditer(tok):
        if m.group(1):
            for i in range(int(m.group(2)), int(m.group(3)) + 1):
                out.add(m.group(1) + str(i))
        elif m.group(4):
            out.add(m.group(4) + m.group(5))
        elif m.group(6):
            out.add(m.group(6))
        elif m.group(7):
            out.add(m.group(7).split("_")[0])
    return out


class Ins:
    def __init__(self, text):
        self.text = text
        t = text.split(";")[0].strip()
        self.is_label = t.endswith(":")
        self.is_dir = t.startswith(".") or t == ""
        self.op = t.split()[0] if t else ""
        rest = t[len(self.op):]
        self.ops = [x.strip() for x in rest.split(",")] if rest.strip() else []
        op = self.op
        self.valu = op.startswith("v_")
        self.mfma = op.startswith("v_mfma")
        self.salu = op.startswith("s_")
        self.ds = op.startswith("ds_")
        self.vmem = op.startswith("buffer_") or op.startswith("global_")
        self.trans = any(op.startswith(x) for x in TRANS)
        self.dpp = ("row_" in t) or ("quad_perm" in t) or ("wave_" in t)
        self.lds_dma = self.vmem and re.search(r"\blds\b", t) is not None
        self.dst = set()
        self.src = set()
        self.mf_ab = set()
        self.mf_c = set()
        self.st_data = set()
        if self.is_label or self.is_dir:
            return
        o = self.ops
        if self.mfma:
            self.dst = regs_of(o[0]); self.mf_ab = regs_of(o[1]) | regs_of(o[2]); self.mf_c = regs_of(o[3])
            self.src = self.mf_ab | self.mf_c
            self.passes = 8 if "32x32x16" in op else 4
        elif self.valu:
            if op == "v_nop":
                pass
            else:
                self.dst = regs_of(o[0])
                for x in o[1:]:
                    self.src |= regs_of(x)
                if op.startswith("v_cndmask") and len(o) == 3:
                    self.src.add("vcc")
                if op.startswith(("v_fmac", "v_mac", "v_writelane", "v_dot2c", "v_pk_fmac")) or self.dpp or "d16" in op:
                    self.src |= self.dst
                if op.startswith(("v_add_co", "v_sub_co", "v_addc_co", "v_subb_co")):
                    self.dst |= regs_of(o[1])
                if op.startswith("v_permlane") and "swap" in op:
                    self.dst |= regs_of(o[1]); self.src |= regs_of(o[0])
        elif self.ds:
            if op.startswith("ds_read") or op.startswith("ds_bpermute") or op.startswith("ds_swizzle"):
                self.dst = regs_of(o[0])
                for x in o[1:]:
                    self.src |= regs_of(x)
            else:
                for x in o:
                    self.src |= regs_of(x)
        elif self.vmem:
            if "store" in op or ("atomic" in op):
                for x in o:
                    self.src |= regs_of(x)
                if "x4" in op or "x3" in op:
                    self.st_data = regs_of(o[0]) if op.startswith("buffer") else regs_of(o[1])
            elif self.lds_dma:
                for x in o:
                    self.src |= regs_of(x)
                self.src.add("m0")
            elif op.startswith("buffer_inv") or op.startswith("buffer_wbl2"):
                pass
            else:
                self.dst = regs_of(o[0])
                for x in o[1:]:
                    self.src |= regs_of(x)
        elif self.salu:
            if op.startswith(("s_cmp", "s_cbranch", "s_branch", "s_waitcnt", "s_barrier", "s_nop", "s_endpgm",
                              "s_setprio", "s_sleep", "s_bitcmp")):
                for x in o:
                    self.src |= regs_of(x)
            else:
                self.dst = regs_of(o[0])
                for x in o[1:]:
                    self.src |= regs_of(x)
                if "saveexec" in op:
                    self.dst.add("exec")

    def states(self):
        if self.is_label or self.is_dir:
            return 0
        if self.op == "s_nop":
            return int(self.ops[0], 0) + 1
        return 1


def isv(r):
    return r[0] in "va" and r[1:].isdigit()


def iss(r):
    return (r[0] == "s" and r[1:].isdigit()) or r == "vcc"


def need(p, c):
    n = 0
    pv = {r for r in p.dst if isv(r)}
    ps = {r for r in p.dst if iss(r)}
    if p.mfma:
        k = 8 if p.passes == 4 else 12
        if c.mfma:
            if p.dst & c.mf_ab: n = max(n, k)
            if p.dst & c.mf_c and not (p.dst == c.mf_c and p.passes == c.passes): n = max(n, k - 2)
            if p.dst & c.dst and not (p.dst == c.mf_c): n = max(n, k)
        elif c.valu or c.vmem or c.ds:
            if p.dst & (c.src | c.dst): n = max(n, k)
        if c.valu and not c.mfma and (p.mf_c & c.dst): n = max(n, 3 if p.passes == 4 else 7)
    elif p.valu:
        if c.mfma and (pv & c.src): n = max(n, 2)
        if c.valu and c.op.startswith(("v_readfirstlane", "v_readlane")) and (pv & c.src): n = max(n, 1)
        if c.valu and c.dpp and (pv & c.src): n = max(n, 2)
        if c.valu and c.op.startswith("v_permlane") and (pv & c.src): n = max(n, 2)
        if p.trans and c.valu and (pv & c.src): n = max(n, 1)
        if ("op_sel" in p.text or "sdwa" in p.text or "d16" in p.op) and c.valu and (pv & (c.src | c.dst)): n = max(n, 1)
        if ps:
            if c.valu and (ps & c.src):
                n = max(n, 4 if c.op.startswith(("v_readlane", "v_writelane")) else 2)
            if c.vmem and (ps & c.src): n = max(n, 5)
            if c.salu and (ps & c.src): n = max(n, 1)
        if "exec" in p.dst:
            n = max(n, 5) if (c.valu or c.vmem or c.ds) else n
    elif p.salu:
        if "m0" in p.dst and c.lds_dma: n = max(n, 1)
    if p.st_data and (c.valu or c.ds or c.vmem) and (p.st_data & c.dst): n = max(n, 2)
    return n


class Asm:
    def __init__(self):
        self.l = []

    def __call__(self, s):
        for line in s.split("\n"):
            line = line.strip()
            if line:
                self.l.append(line)

    def text(self):
        out = []
        for t in self.l:
            c = Ins(t)
            if not (c.is_label or c.is_dir):
                dist = 0
                req = 0
                for p in reversed(out):
                    if dist >= 12:
                        break
                    if p.is_label or p.is_dir:
                        continue
                    r = need(p, c) - dist
                    req = max(req, r)
                    dist += p.states()
                if req > 0:
                    out.append(Ins(f"s_nop {req - 1}"))
            out.append(c)
        return "\n".join(("" if (i.is_label or i.text.startswith(".")) else "  ") + i.text for i in out) + "\n"


def interleave(main, fill, per=1, start=0):
    out = []
    fi = 0
    for i, m in enumerate(main):
        out.append(m)
        if i >= start:
            for _ in range(per):
                if fi < len(fill):
                    out.append(fill[fi]); fi += 1
    out.extend(fill[fi:])
    return out
```

```python
import sys, os
sys.path.insert(0, os.path.dirname(__file__))
from asmlib import Asm, interleave

NAME = "gated_mix__ssm_conv_h3__dense_activation_silu__prompt"
U_OFF = 0
W2F_OFF = 5242880
HF_OFF = 7208960
Y_OFF = 13500416
G_OFF = 16121856
FLAG_OFF = 16138240
WS_SIZE = 16154624

SX, SK_, SV, SSK, SH, SW1, SW2, SGW, SOUT, SWS = 8, 12, 16, 20, 24, 28, 32, 36, 40, 44
RB, CB, W = "s4", "s5", "s6"


def srd(b): return f"s[{b}:{b+3}]"
def v(b, n=1): return f"v{b}" if n == 1 else f"v[{b}:{b+n-1}]"
def a(b, n=1): return f"a{b}" if n == 1 else f"a[{b}:{b+n-1}]"


def prologue(A, end):
    A(f"s_cmp_ge_u32 s2, 256\ns_cbranch_scc1 {end}")
    A("s_load_dwordx16 s[48:63], s[0:1], 0\ns_load_dwordx8 s[64:71], s[0:1], 64\ns_load_dwordx2 s[72:73], s[0:1], 96")
    A("v_lshrrev_b32 v1, 6, v0\nv_and_b32 v0, 63, v0\nv_readfirstlane_b32 s6, v1")
    A("s_lshr_b32 s3, s2, 3\ns_and_b32 s7, s2, 7")
    A("s_lshr_b32 s4, s7, 1\ns_lshl_b32 s4, s4, 3\ns_lshr_b32 s5, s3, 2\ns_add_u32 s4, s4, s5")
    A("s_and_b32 s5, s7, 1\ns_lshl_b32 s5, s5, 2\ns_and_b32 s3, s3, 3\ns_add_u32 s5, s5, s3")
    for b, n in ((SX, 2621440), (SK_, 2621440), (SV, 2621440), (SSK, 5120), (SH, 2621440), (SW1, 1966080),
                 (SW2, 1966080), (SGW, 1280), (SOUT, 2621440), (SWS, WS_SIZE)):
        A(f"s_mov_b32 s{b+2}, {n}\ns_mov_b32 s{b+3}, 0x00020000")
    A("s_waitcnt lgkmcnt(0)")
    for b, p in ((SX, 48), (SK_, 50), (SV, 52), (SSK, 54), (SH, 56), (SW1, 62), (SW2, 64), (SGW, 66), (SOUT, 68),
                 (SWS, 72)):
        A(f"s_mov_b32 s{b}, s{p}\ns_mov_b32 s{b+1}, s{p+1}")


def unpack(A, d, s):
    A(f"v_lshlrev_b32 v{d}, 16, v{s}\nv_and_b32 v{d+1}, 0xffff0000, v{s}")


def p1(A, L0, st=""):
    KIMG, VIMG, W2IMG = L0, L0 + 11136, L0 + 22272
    A("v_mul_u32_u24 v1, 205, v0\nv_lshrrev_b32 v1, 11, v1\nv_mul_u32_u24 v2, 10, v1\nv_sub_u32 v2, v0, v2")
    A("v_mul_u32_u24 v3, 1280, v1\nv_lshl_add_u32 v3, v2, 4, v3")
    A("s_mul_i32 s7, s4, 81920\ns_mul_i32 s3, s5, 160\ns_add_u32 s7, s7, s3")
    A("s_and_b32 s74, s6, 1\ns_mul_i32 s75, s74, 40960\ns_add_u32 s75, s75, s7")
    A("v_add_u32 v5, s75, v3\nv_subrev_u32 v4, 5120, v5")
    A("s_cmp_lt_u32 s6, 2")
    A(f"s_cselect_b32 s76, s{SK_}, s{SV}\ns_cselect_b32 s77, s{SK_+1}, s{SV+1}")
    A("s_mov_b32 s78, 2621440\ns_mov_b32 s79, 0x00020000")
    A(f"s_cselect_b32 s80, {KIMG}, {VIMG}\ns_mul_i32 s74, s74, 5248\ns_add_u32 s80, s80, s74")
    A("s_mov_b32 exec_lo, -1\ns_mov_b32 exec_hi, 0xff")
    for i in range(9):
        A(f"s_add_u32 m0, s80, {(i >> 1) * 1312 + (i & 1) * 640}")
        if i == 0:
            A("buffer_load_dwordx4 v4, s[76:79], 0 offen lds")
        else:
            A(f"s_mov_b32 s81, {(i - 1) * 5120}")
            A("buffer_load_dwordx4 v5, s[76:79], s81 offen lds")
    A("s_mov_b64 exec, -1")
    A("s_cmp_lt_u32 s4, 8\ns_cbranch_scc1 L_p1_now2a")
    A("s_sub_u32 s82, s7, 655360")
    for t in range(3):
        if t == 2:
            A("s_cmp_ge_u32 s6, 2\ns_cbranch_scc1 L_p1_now2a")
        A(f"s_lshl_b32 s83, s6, 6\ns_add_u32 s83, s83, {256 * t}")
        A("v_add_u32 v6, s83, v0\nv_mul_u32_u24 v7, 6554, v6\nv_lshrrev_b32 v7, 16, v7")
        A("v_mul_u32_u24 v8, 10, v7\nv_sub_u32 v8, v6, v8\nv_mul_u32_u24 v7, 1280, v7\nv_lshl_add_u32 v7, v8, 4, v7")
        A(f"s_lshl_b32 s83, s83, 4\ns_add_u32 m0, s83, {W2IMG}")
        A(f"buffer_load_dwordx4 v7, {srd(SW2)}, s82 offen lds")
    A("L_p1_now2a:")
    A("v_lshrrev_b32 v9, 3, v0\nv_lshlrev_b32 v9, 5, v9")
    A("s_mul_i32 s83, s5, 640\ns_mul_i32 s84, s6, 160\ns_add_u32 s83, s83, s84")
    A(f"buffer_load_dwordx4 v[10:13], v9, {srd(SSK)}, s83 offen")
    A(f"buffer_load_dwordx4 v[14:17], v9, {srd(SSK)}, s83 offen offset:16")
    A("v_and_b32 v18, 31, v0\nv_lshlrev_b32 v18, 3, v18\nv_lshrrev_b32 v19, 5, v0\nv_mul_u32_u24 v19, 1280, v19\nv_add_u32 v19, v19, v18")
    A("s_lshl_b32 s84, s4, 6\ns_lshl_b32 s85, s5, 3\ns_add_u32 s84, s84, s85\ns_lshl_b32 s85, s6, 1\ns_add_u32 s84, s84, s85")
    A("s_mul_i32 s85, s84, 1280")
    for j in range(5):
        A(f"buffer_load_dwordx2 v[{20+2*j}:{21+2*j}], v19, {srd(SX)}, s85 offen offset:{256*j}")
    for j in range(5):
        A(f"buffer_load_dwordx2 v[{30+2*j}:{31+2*j}], v18, {srd(SGW)}, 0 offen offset:{256*j}")
    A("s_waitcnt vmcnt(0)\ns_barrier")
    A("v_and_b32 v6, 7, v0\nv_mul_u32_u24 v6, 1312, v6\nv_lshrrev_b32 v7, 3, v0\nv_lshl_add_u32 v6, v7, 3, v6")
    A("s_mul_i32 s83, s6, 40\nv_add_u32 v6, s83, v6")
    ko = lambda i: (i >> 3) * 1312 + (i & 7) * 160
    for i in range(12):
        A(f"ds_read_b64 v[{40+2*i}:{41+2*i}], v6 offset:{KIMG + ko(i)}")
    for i in range(3, 12):
        A(f"ds_read_b64 v[{64+2*(i-3)}:{65+2*(i-3)}], v6 offset:{VIMG + ko(i)}")
    for j in range(10):
        unpack(A, 84, 20 + j); unpack(A, 86, 30 + j)
        A("v_pk_mul_f32 v[84:85], v[84:85], v[86:87]")
        A(f"v_cvt_pk_bf16_f32 v{20+j}, v84, v85")
    unpack(A, 84, 20)
    for j in range(1, 10):
        unpack(A, 86, 20 + j)
        A("v_pk_add_f32 v[84:85], v[84:85], v[86:87]")
    A("v_add_f32 v84, v84, v85")
    for sh in (8, 4, 2, 1):
        A(f"v_add_f32_dpp v84, v84, v84 row_ror:{sh} row_mask:0xf bank_mask:0xf")
    A("v_add_f32_dpp v84, v84, v84 row_bcast:15 row_mask:0xa bank_mask:0xf")
    A("v_cvt_pk_bf16_f32 v84, v84, v84\nv_lshlrev_b32 v84, 16, v84")
    A("v_mul_f32 v84, 0xbfb8aa3b, v84\nv_exp_f32 v84, v84\nv_add_f32 v84, 1.0, v84\nv_rcp_f32 v84, v84")
    A("v_cvt_pk_bf16_f32 v84, v84, v84\nv_lshlrev_b32 v84, 16, v84")
    A("v_sub_f32 v85, 1.0, v84\nv_cvt_pk_bf16_f32 v85, v85, v85\nv_lshlrev_b32 v85, 16, v85")
    A("v_lshrrev_b32 v86, 5, v0\nv_lshlrev_b32 v86, 3, v86")
    A(f"s_lshl_b32 s85, s84, 3\ns_add_u32 s85, s85, {G_OFF}")
    A("s_mov_b32 exec_lo, 0x10000\ns_mov_b32 exec_hi, 0x10000")
    A(f"buffer_store_dwordx2 v[84:85], v86, {srd(SWS)}, s85 offen{st}")
    A("s_mov_b64 exec, -1")
    for c in range(4):
        A(f"v_lshlrev_b32 v{90+c}, 16, v{10+2*c}\nv_and_b32 v{94+c}, 0xffff0000, v{10+2*c}")
        A(f"v_lshlrev_b32 v{98+c}, 16, v{11+2*c}\nv_and_b32 v{102+c}, 0xffff0000, v{11+2*c}")
    A("s_cmp_lt_u32 s4, 8\ns_cbranch_scc1 L_p1_now2b")
    A("v_lshrrev_b32 v7, 2, v0\nv_mul_u32_u24 v7, 160, v7\nv_and_b32 v8, 3, v0\nv_lshl_add_u32 v7, v8, 3, v7")
    for t in range(3):
        A(f"s_add_u32 s83, s6, {4*t}\ns_lshl_b32 s86, s83, 5\ns_cmp_ge_u32 s83, 5\ns_cselect_b32 s87, 4960, 0\ns_add_u32 s86, s86, s87")
        A("v_add_u32 v8, s86, v7")
        A(f"ds_read_b64_tr_b16 v[{200+4*t}:{201+4*t}], v8 offset:{W2IMG}")
        A(f"ds_read_b64_tr_b16 v[{202+4*t}:{203+4*t}], v8 offset:{W2IMG + 2560}")
    A("L_p1_now2b:")
    A("s_waitcnt lgkmcnt(0)")
    for i in range(12):
        unpack(A, 108 + 4 * i, 40 + 2 * i); unpack(A, 110 + 4 * i, 41 + 2 * i)
    for ip in range(9):
        for hf in range(2):
            o = 156 + 4 * ip + 2 * hf
            for j in range(4):
                kr = 108 + 4 * (ip + 3 - j) + 2 * hf
                tr = 90 + 4 * j + 2 * hf
                if j == 0:
                    A(f"v_pk_mul_f32 v[{o}:{o+1}], v[{kr}:{kr+1}], v[{tr}:{tr+1}]")
                else:
                    A(f"v_pk_fma_f32 v[{o}:{o+1}], v[{kr}:{kr+1}], v[{tr}:{tr+1}], v[{o}:{o+1}]")
            unpack(A, 84, 64 + 2 * ip + hf)
            A(f"v_pk_mul_f32 v[{o}:{o+1}], v[{o}:{o+1}], v[84:85]")
    A("v_lshrrev_b32 v7, 3, v0\nv_lshlrev_b32 v7, 15, v7\nv_and_b32 v8, 7, v0\nv_lshl_add_u32 v7, v8, 4, v7")
    A(f"s_mul_i32 s83, s5, {80*8192}\ns_mul_i32 s86, s6, {20*8192}\ns_add_u32 s83, s83, s86\ns_lshl_b32 s86, s4, 7\ns_add_u32 s83, s83, s86")
    if U_OFF: A(f"s_add_u32 s83, s83, {U_OFF}")
    A("s_mov_b32 exec_lo, -1\ns_mov_b32 exec_hi, 0xff")
    for c in range(4):
        for rho in range(2):
            d = 40 + 4 * (2 * c + rho)
            for q in range(4):
                A(f"v_cvt_pk_bf16_f32 v{d+q}, v{156 + 4*(7+rho-2*q) + c}, v{156 + 4*(6+rho-2*q) + c}")
            A(f"s_add_u32 s86, s83, {c*8192 + rho*4096}")
            A(f"buffer_store_dwordx4 v[{d}:{d+3}], v7, {srd(SWS)}, s86 offen{st}")
    A("s_mov_b64 exec, -1")
    A("s_cmp_lt_u32 s4, 8\ns_cbranch_scc1 L_p1_now2c")
    A(f"s_mul_i32 s83, s5, 240\ns_mul_i32 s86, s4, 10\ns_add_u32 s83, s83, s86\ns_add_u32 s83, s83, s6\ns_lshl_b32 s83, s83, 10\ns_add_u32 s83, s83, {W2F_OFF - 80*1024}")
    A("v_lshlrev_b32 v8, 4, v0")
    for t in range(3):
        if t == 2:
            A("s_cmp_ge_u32 s6, 2\ns_cbranch_scc1 L_p1_now2c")
        A(f"s_add_u32 s86, s83, {4096*t}")
        A(f"buffer_store_dwordx4 v[{200+4*t}:{203+4*t}], v8, {srd(SWS)}, s86 offen{st}")
    A("L_p1_now2c:")


G1_ACC = 16
G1_WF = (64, 88)
G1_XF = (112, 120)
G1_WV = 128
G1_XV = 134
G1_RA = 136


def g1_setup(A, NB):
    A("s_mul_i32 s74, s6, 49152\ns_mul_i32 s75, s5, 384\ns_add_u32 s74, s74, s75")
    for j in range(6):
        A(f"v_add_u32 v1, {64*j}, v0\nv_mul_u32_u24 v2, 2731, v1\nv_lshrrev_b32 v2, 16, v2")
        A("v_mul_u32_u24 v3, 24, v2\nv_sub_u32 v3, v1, v3")
        A("v_and_b32 v4, 2, v2\nv_lshrrev_b32 v5, 1, v2\nv_and_b32 v5, 4, v5\nv_or_b32 v4, v4, v5")
        A("v_xor_b32 v3, v3, v4\nv_mul_u32_u24 v2, 3072, v2\nv_lshl_add_u32 v2, v3, 4, v2")
        A(f"v_add_u32 v{G1_WV+j}, s74, v2")
    A("v_lshrrev_b32 v1, 3, v0\nv_and_b32 v2, 7, v0\nv_xor_b32 v2, v2, v1")
    A("v_lshrrev_b32 v3, 2, v1\nv_lshlrev_b32 v3, 1, v3\nv_and_b32 v4, 1, v1\nv_or_b32 v3, v3, v4")
    A("v_and_b32 v4, 2, v1\nv_lshl_add_u32 v3, v4, 4, v3")
    A("v_mul_u32_u24 v3, 1280, v3\nv_lshl_add_u32 v3, v2, 4, v3")
    A("s_mul_i32 s74, s4, 81920\ns_mul_i32 s75, s6, 10240\ns_add_u32 s74, s74, s75")
    A(f"v_add_u32 v{G1_XV}, s74, v3\nv_add_u32 v{G1_XV+1}, 5120, v{G1_XV}")
    A("v_lshrrev_b32 v1, 4, v0\nv_lshrrev_b32 v2, 2, v0\nv_and_b32 v2, 3, v2")
    A("v_lshl_add_u32 v3, v1, 3, v2\nv_mul_u32_u24 v3, 384, v3\nv_and_b32 v4, 3, v0\nv_lshl_add_u32 v3, v4, 3, v3")
    A("v_lshrrev_b32 v4, 1, v2\nv_and_b32 v5, 1, v1\nv_lshl_add_u32 v4, v5, 1, v4")
    A("s_and_b32 s74, s6, 1\ns_mul_i32 s74, s74, 6")
    for t in range(6):
        A(f"s_add_u32 s75, s74, {t}\nv_xor_b32 v5, s75, v4\nv_lshl_add_u32 v{G1_RA+t}, v5, 5, v3")
    A("v_and_b32 v2, 15, v0\nv_and_b32 v3, 7, v0\nv_xor_b32 v3, v3, v1\nv_lshlrev_b32 v2, 7, v2")
    A("s_lshr_b32 s74, s6, 1\ns_lshl_b32 s74, s74, 12\ns_add_u32 s74, s74, 24576")
    A(f"v_add_u32 v2, s74, v2\nv_lshl_add_u32 v{G1_RA+6}, v3, 4, v2\nv_xor_b32 v{G1_RA+7}, 64, v{G1_RA+6}")
    for s in range(1, (NB + 1) // 2):
        for i in range(8):
            A(f"v_add_u32 v{G1_RA+8*s+i}, {65536*s}, v{G1_RA+i}")
    A("s_mul_i32 s88, s6, 6144\ns_lshl_b32 s89, s6, 11\ns_add_u32 s89, s89, 24576")
    for i in range(48):
        A(f"v_mov_b32 v{G1_ACC+i}, 0")


def g1_dma(stage, NB):
    buf = stage % NB
    out = []
    for j in range(2):
        out.append(f"s_add_u32 m0, s89, {buf*32768 + j*1024}\ns_mov_b32 s90, {stage*128}\n"
                   f"buffer_load_dwordx4 v{G1_XV+j}, {srd(SX)}, s90 offen lds")
    for j in range(6):
        out.append(f"s_add_u32 m0, s88, {buf*32768 + j*1024}\ns_mov_b32 s90, {stage*196608}\n"
                   f"buffer_load_dwordx4 v{G1_WV+j}, {srd(SW1)}, s90 offen lds")
    return out


def g1_reads(stage, kk, NB):
    buf = stage % NB
    ra = G1_RA + 8 * (buf >> 1)
    bo = (buf & 1) * 32768
    out = []
    for st2 in range(2):
        out.append(f"ds_read_b128 {v(G1_XF[kk] + 4*st2, 4)}, v{ra+6+kk} offset:{bo + st2*2048}")
    for t in range(6):
        for h in range(2):
            out.append(f"ds_read_b64_tr_b16 {v(G1_WF[kk] + 4*t + 2*h, 2)}, v{ra+t} offset:{bo + kk*12288 + h*1536}")
    return out


def g1_mfmas(kk):
    out = []
    for t in range(6):
        for st2 in range(2):
            d = G1_ACC + (st2 * 6 + t) * 4
            out.append(f"v_mfma_f32_16x16x32_bf16 {v(d,4)}, {v(G1_WF[kk]+4*t,4)}, {v(G1_XF[kk]+4*st2,4)}, {v(d,4)}")
    return out


def mix(mf, reads, dmas):
    out = []
    ri = 0
    for i, m in enumerate(mf):
        if i % 3 == 0 and dmas:
            out.append(dmas.pop(0))
        out.append(m)
        for _ in range(2):
            if ri < len(reads):
                out.append(reads[ri]); ri += 1
    out.extend(reads[ri:])
    out.extend(dmas)
    return out


def gemm1(A, NB, st=""):
    NS = 10
    g1_setup(A, NB)
    for s in range(NB - 1):
        for g in g1_dma(s, NB): A(g)
    for t in range(NS):
        issued = min(NS, t + NB - 1)
        A(f"s_waitcnt vmcnt({8 * (issued - t - 1)})\ns_barrier")
        d = g1_dma(t + NB - 1, NB) if t + NB - 1 < NS else []
        if t == 0:
            for x in g1_reads(0, 0, NB): A(x)
            for x in d[:4]: A(x)
        else:
            for x in mix(g1_mfmas(1), g1_reads(t, 0, NB), d[:4]): A(x)
        A("s_waitcnt lgkmcnt(0)")
        for x in mix(g1_mfmas(0), g1_reads(t, 1, NB), d[4:]): A(x)
        A("s_waitcnt lgkmcnt(0)")
    for x in g1_mfmas(1): A(x)
    A("v_lshlrev_b32 v1, 4, v0")
    A("s_mul_i32 s74, s4, 48\ns_mul_i32 s75, s5, 6\ns_add_u32 s74, s74, s75\ns_and_b32 s75, s6, 1\ns_mul_i32 s75, s75, 3\ns_add_u32 s74, s74, s75")
    A(f"s_lshl_b32 s74, s74, 2\ns_and_b32 s75, s6, 2\ns_add_u32 s74, s74, s75\ns_lshl_b32 s74, s74, 10\ns_add_u32 s74, s74, {HF_OFF}")
    A("s_mov_b32 s76, 0xbfb8aa3b\ns_mov_b32 s77, 0xbfb8aa3b\ns_mov_b32 s78, 1.0\ns_mov_b32 s79, 1.0")
    for tp in range(3):
        for st2 in range(2):
            d = G1_ACC + (st2 * 6 + 2 * tp) * 4
            T = 64 + ((tp * 2 + st2) & 1) * 16
            for q in range(4):
                A(f"v_pk_mul_f32 {v(T+2*q,2)}, {v(d+2*q,2)}, s[76:77]")
            for q in range(8):
                A(f"v_exp_f32 v{T+q}, v{T+q}")
            for q in range(4):
                A(f"v_pk_add_f32 {v(T+2*q,2)}, {v(T+2*q,2)}, s[78:79]")
            for q in range(8):
                A(f"v_rcp_f32 v{T+q}, v{T+q}")
            for q in range(4):
                A(f"v_pk_mul_f32 {v(T+2*q,2)}, {v(T+2*q,2)}, {v(d+2*q,2)}")
            for q in range(4):
                A(f"v_cvt_pk_bf16_f32 v{T+8+q}, v{T+2*q}, v{T+2*q+1}")
            A(f"s_add_u32 s75, s74, {tp*4096 + st2*1024}")
            A(f"buffer_store_dwordx4 {v(T+8,4)}, v1, {srd(SWS)}, s75 offen{st}")


CV_ACC = 16
CV_U = (48, 80)
CV_H = (112, 144)
CH_BYTES = 17536


def conv(A, L0, end, st="", ld=""):
    A(f"s_lshl_b32 s74, s6, 5\ns_add_u32 s74, s74, s4\ns_cmp_ge_u32 s74, 80\ns_cbranch_scc1 {end}")
    A("s_mul_i32 s75, s5, 80\ns_add_u32 s74, s74, s75")
    A("s_lshl_b32 s75, s74, 12\ns_add_u32 s76, s56, s75\ns_addc_u32 s77, s57, 0\ns_load_dwordx2 s[78:79], s[76:77], 0")
    A("s_lshl_b32 s80, s74, 1\ns_and_b32 s80, s80, -4\ns_load_dword s81, s[58:59], s80")
    A(f"s_mul_i32 s82, s6, {CH_BYTES}\ns_add_u32 s82, s82, {L0}")
    A("v_lshlrev_b32 v1, 4, v0")
    A(f"s_lshl_b32 s83, s74, 13")
    if U_OFF: A(f"s_add_u32 s83, s83, {U_OFF}")
    A("s_add_u32 s84, s83, 4096\ns_add_u32 s85, s75, 8\ns_add_u32 s86, s75, 4")
    for base, so, sr, f in ((448, "s83", SWS, ld), (9152 + 64, "s85", SH, ""), (4576 + 448, "s84", SWS, ld),
                            (9152 + 4224 + 64, "s86", SH, "")):
        A(f"s_add_u32 m0, s82, {base}")
        for j in range(4):
            A(f"buffer_load_dwordx4 v1, {srd(sr)}, {so} offen offset:{1024*j} lds{f}")
    A("v_mov_b32 v4, 0\nv_mov_b32 v5, 0\nv_mov_b32 v6, 0\nv_mov_b32 v7, 0")
    A("v_lshrrev_b32 v2, 5, v0\nv_mul_u32_u24 v2, 4576, v2\nv_and_b32 v3, 31, v0\nv_lshl_add_u32 v2, v3, 4, v2\nv_add_u32 v2, s82, v2")
    A("s_mov_b32 exec_lo, 0x0fffffff\ns_mov_b32 exec_hi, 0x0fffffff")
    A("ds_write_b128 v2, v[4:7]")
    A("s_mov_b64 exec, -1")
    for i in range(32):
        A(f"v_mov_b32 v{CV_ACC+i}, 0")
    A("v_and_b32 v2, 1, v0\nv_mul_u32_u24 v2, 4576, v2\nv_and_b32 v3, 14, v0\nv_lshl_add_u32 v2, v3, 5, v2")
    A("v_lshrrev_b32 v3, 4, v0\nv_lshlrev_b32 v8, 4, v3\nv_sub_u32 v2, v2, v8\ns_add_u32 s87, s82, 48\nv_add_u32 v10, s87, v2")
    A("v_and_b32 v2, 15, v0\nv_lshlrev_b32 v2, 2, v2\nv_add_u32 v2, v2, v8")
    A("v_and_b32 v3, 1, v0\nv_mul_u32_u24 v3, 4228, v3\nv_sub_u32 v2, v2, v3")
    A(f"s_add_u32 s87, s82, {9152 + 4224}\nv_add_u32 v11, s87, v2")
    A("s_waitcnt lgkmcnt(0)")
    A("s_bitcmp1_b32 s74, 0\ns_cselect_b32 s80, 0, 16\ns_lshl_b32 s81, s81, s80\ns_and_b32 s81, s81, 0xffff0000")
    A("s_lshl_b32 s80, s78, 16\nv_mov_b32 v2, s80\nv_add_f32 v2, s81, v2\ns_and_b32 s80, s78, 0xffff0000\nv_mov_b32 v3, s80")
    A("v_cvt_pk_bf16_f32 v2, v2, v3\nv_readfirstlane_b32 s80, v2")
    A("v_writelane_b32 v4, s80, 14\nv_writelane_b32 v4, s79, 15\nv_writelane_b32 v4, s80, 31")
    A("v_lshrrev_b32 v2, 4, v0\nv_mul_u32_u24 v2, 4224, v2\nv_and_b32 v3, 15, v0\nv_lshl_add_u32 v2, v3, 2, v2")
    A("s_add_u32 s87, s82, 9152\nv_add_u32 v2, s87, v2")
    A("s_mov_b32 exec_lo, -1\ns_mov_b32 exec_hi, 0")
    A("ds_write_b32 v2, v4")
    A("s_mov_b64 exec, -1")
    A("s_waitcnt vmcnt(0) lgkmcnt(0)")

    def reads(r):
        s = r & 1
        out = []
        for p in range(8):
            out.append(f"ds_read_b128 {v(CV_U[s]+4*p,4)}, v10 offset:{512*p + 64*r}")
            for h in range(2):
                out.append(f"ds_read_b64 {v(CV_H[s]+4*p+2*h,2)}, v11 offset:{64*(7-r) + 512*p + 8*h}")
        return out

    def mfmas(r):
        s = r & 1
        out = []
        for Ap in range(8):
            for p in range(Ap + 1):
                d = CV_ACC + 4 * Ap
                out.append(f"v_mfma_f32_16x16x32_bf16 {v(d,4)}, {v(CV_U[s]+4*p,4)}, {v(CV_H[s]+4*(Ap-p),4)}, {v(d,4)}")
        return out

    for x in reads(0): A(x)
    for r in range(8):
        A("s_waitcnt lgkmcnt(0)")
        for x in interleave(mfmas(r), reads(r + 1) if r < 7 else [], per=1): A(x)
    A("v_lshlrev_b32 v1, 3, v0")
    A(f"s_add_u32 s75, s75, {Y_OFF}")
    for Ap in range(8):
        d = CV_ACC + 4 * Ap
        A(f"v_cvt_pk_bf16_f32 v{48+2*Ap}, v{d}, v{d+1}\nv_cvt_pk_bf16_f32 v{49+2*Ap}, v{d+2}, v{d+3}")
        A(f"buffer_store_dwordx2 {v(48+2*Ap,2)}, v1, {srd(SWS)}, s75 offen offset:{512*Ap}{st}")


G2_ACC = 16
G2_HF = 96
G2_NH = 40


def gemm2(A, L0, ld=""):
    RED, YIMG, QIMG = L0, L0 + 81920, L0 + 92160
    A("v_lshlrev_b32 v1, 4, v0")
    A(f"s_mul_i32 s74, s5, 240\ns_mul_i32 s75, s6, 60\ns_add_u32 s74, s74, s75\ns_lshl_b32 s74, s74, 10\ns_add_u32 s74, s74, {W2F_OFF}")
    A(f"s_mul_i32 s75, s4, 48\ns_mul_i32 s76, s6, 12\ns_add_u32 s75, s75, s76\ns_lshl_b32 s75, s75, 12\ns_add_u32 s75, s75, {HF_OFF}")

    def wload(i):
        return (f"s_add_u32 s77, s74, {(i >> 2) * 4096}\n" if i % 4 == 0 else "") + \
            f"buffer_load_dwordx4 {a(4*i,4)}, v1, {srd(SWS)}, s77 offen offset:{(i & 3) * 1024}{ld}"

    def hload(i):
        return (f"s_add_u32 s78, s75, {(i >> 2) * 4096}\n" if i % 4 == 0 else "") + \
            f"buffer_load_dwordx4 {v(G2_HF + 4*(i % G2_NH),4)}, v1, {srd(SWS)}, s78 offen offset:{(i & 3) * 1024}{ld}"

    A("v_mul_u32_u24 v2, 205, v0\nv_lshrrev_b32 v2, 11, v2\nv_mul_u32_u24 v3, 10, v2\nv_sub_u32 v3, v0, v3")
    A("v_mul_u32_u24 v2, 1280, v2\nv_lshl_add_u32 v2, v3, 4, v2")
    A("s_mul_i32 s80, s4, 81920\ns_mul_i32 s81, s5, 160\ns_add_u32 s80, s80, s81\ns_mul_i32 s81, s6, 10240\ns_add_u32 s80, s80, s81")
    A("v_add_u32 v2, s80, v2")
    A(f"s_mul_i32 s81, s6, 1280\ns_add_u32 s81, s81, {QIMG}")
    A("s_mov_b32 exec_lo, -1\ns_mov_b32 exec_hi, 0xff")
    for i, ro in enumerate((0, 4, 32, 36)):
        A(f"s_add_u32 m0, s81, {ro*160}\ns_mov_b32 s82, {ro*1280}")
        A(f"buffer_load_dwordx4 v2, {srd(SX)}, s82 offen lds")
    A("s_mov_b64 exec, -1")
    A("v_lshrrev_b32 v3, 3, v0\nv_lshlrev_b32 v3, 12, v3\nv_and_b32 v4, 7, v0\nv_lshl_add_u32 v3, v4, 4, v3")
    A(f"s_mul_i32 s82, s5, {80*4096}\ns_lshl_b32 s83, s4, 7\ns_add_u32 s82, s82, s83\ns_lshl_b32 s83, s6, 15\ns_add_u32 s82, s82, s83\ns_add_u32 s82, s82, {Y_OFF}")
    A(f"s_lshl_b32 s83, s6, 10\ns_add_u32 s83, s83, {YIMG}")
    for t in range(3):
        if t == 2:
            A("s_cmp_ge_u32 s6, 2\ns_cbranch_scc1 L_g2_noy")
        A(f"s_add_u32 m0, s83, {4096*t}\ns_add_u32 s84, s82, {t*4*8*4096}")
        A(f"buffer_load_dwordx4 v3, {srd(SWS)}, s84 offen lds{ld}")
    A("L_g2_noy:")
    A("v_and_b32 v4, 15, v0\nv_lshrrev_b32 v5, 2, v4\nv_lshlrev_b32 v5, 1, v5\nv_and_b32 v6, 1, v4\nv_or_b32 v5, v5, v6")
    A("v_and_b32 v6, 2, v4\nv_lshl_add_u32 v4, v6, 4, v5")
    A("v_lshlrev_b32 v5, 3, v4")
    A(f"s_lshl_b32 s84, s4, 9\ns_lshl_b32 s85, s6, 6\ns_add_u32 s84, s84, s85\ns_add_u32 s84, s84, {G_OFF}")
    A(f"buffer_load_dwordx2 v[6:7], v5, {srd(SWS)}, s84 offen{ld}")
    A("v_mul_u32_u24 v4, 160, v4\nv_lshrrev_b32 v5, 4, v0\nv_lshl_add_u32 v4, v5, 3, v4\nv_add_u32 v4, s81, v4")
    for i in range(80):
        A(f"v_mov_b32 v{G2_ACC+i}, 0")
    loads = []
    for ks in range(12):
        loads += [("w", 5 * ks + i) for i in range(5)] + [("h", 4 * ks + i) for i in range(4)]
    emit = lambda x: wload(x[1]) if x[0] == "w" else hload(x[1])
    PRE = 54
    for x in loads[:PRE]: A(emit(x))
    li = PRE
    for ks in range(12):
        A(f"s_waitcnt vmcnt({li - 9 * (ks + 1)})")
        mf = []
        for st_ in range(4):
            for dt in range(5):
                d = G2_ACC + (dt * 4 + st_) * 4
                mf.append(f"v_mfma_f32_16x16x32_bf16 {v(d,4)}, {a(4*(5*ks+dt),4)}, {v(G2_HF+4*((4*ks+st_) % G2_NH),4)}, {v(d,4)}")
        nxt = [emit(x) for x in loads[li:li + 9]]
        li = min(len(loads), li + 9)
        out = []
        for i, m in enumerate(mf):
            out.append(m)
            if i % 2 == 1 and nxt: out.append(nxt.pop(0))
        for x in out + nxt: A(x)
    A(f"s_mul_i32 s84, s6, 20480\ns_add_u32 s84, s84, {RED}\nv_add_u32 v8, s84, v1")
    for dt in range(5):
        for st_ in range(4):
            d = G2_ACC + (dt * 4 + st_) * 4
            A(f"ds_write_b128 v8, {v(d,4)} offset:{(dt*4+st_)*1024}")
    A("s_waitcnt vmcnt(0) lgkmcnt(0)\ns_barrier")
    A(f"s_lshl_b32 s84, s6, 10\ns_add_u32 s84, s84, {RED}\nv_add_u32 v8, s84, v1\nv_add_u32 v9, 40960, v8")
    for sw in range(4):
        for dt in range(5):
            A(f"ds_read_b128 {v(96 + (sw*5+dt)*4, 4)}, v{8 + (sw >> 1)} offset:{(sw & 1)*20480 + dt*4096}")
    A("v_lshrrev_b32 v10, 2, v0\nv_lshlrev_b32 v10, 7, v10\nv_and_b32 v11, 3, v0\nv_lshl_add_u32 v10, v11, 3, v10")
    A(f"s_lshl_b32 s84, s6, 5\ns_add_u32 s84, s84, {YIMG}\nv_add_u32 v10, s84, v10")
    for dt in range(5):
        A(f"ds_read_b64_tr_b16 {v(176+2*dt,2)}, v10 offset:{dt*2048}")
    for dt in range(5):
        A(f"ds_read_b64 {v(186+2*dt,2)}, v4 offset:{dt*32}")
    A("v_mov_b32 v12, v6\nv_mov_b32 v13, v6\nv_mov_b32 v14, v7\nv_mov_b32 v15, v7")
    A("s_waitcnt lgkmcnt(0)")
    for dt in range(5):
        for hf in range(2):
            b = 96 + dt * 4 + 2 * hf
            A(f"v_pk_add_f32 {v(b,2)}, {v(b,2)}, {v(b+20,2)}")
            A(f"v_pk_add_f32 {v(b+40,2)}, {v(b+40,2)}, {v(b+60,2)}")
            unpack(A, 200, 176 + 2 * dt + hf); unpack(A, 202, 186 + 2 * dt + hf)
            A(f"v_pk_add_f32 {v(b,2)}, {v(b,2)}, {v(b+40,2)}")
            A("v_pk_mul_f32 v[200:201], v[200:201], v[202:203]")
            A(f"v_pk_mul_f32 {v(b,2)}, {v(b,2)}, v[14:15]")
            A(f"v_pk_fma_f32 {v(b,2)}, v[200:201], v[12:13], {v(b,2)}")
            A(f"v_cvt_pk_bf16_f32 v{204+2*dt+hf}, v{b}, v{b+1}")
        A(f"ds_write_b64 v4, {v(204+2*dt,2)} offset:{dt*32}")
    A("s_waitcnt lgkmcnt(0)")
    A("v_add_u32 v8, s81, v1")
    for i, ro in enumerate((0, 4, 32, 36)):
        A(f"ds_read_b128 {v(216+4*i,4)}, v8 offset:{ro*160}")
    A("s_mov_b32 exec_lo, -1\ns_mov_b32 exec_hi, 0xff")
    for i, ro in enumerate((0, 4, 32, 36)):
        A(f"s_waitcnt lgkmcnt({3-i})\ns_mov_b32 s82, {ro*1280}")
        A(f"buffer_store_dwordx4 {v(216+4*i,4)}, v2, {srd(SOUT)}, s82 offen")


def kernel_text(name, body):
    return (f".globl {name}\n.p2align 8\n.type {name},@function\n{name}:\n" + body)


def desc(name, vgpr, acc):
    return f""".p2align 6
.amdhsa_kernel {name}
  .amdhsa_next_free_vgpr {vgpr}
  .amdhsa_next_free_sgpr 102
  .amdhsa_accum_offset {acc}
  .amdhsa_group_segment_fixed_size 0
  .amdhsa_kernarg_size 104
  .amdhsa_user_sgpr_count 2
  .amdhsa_user_sgpr_kernarg_segment_ptr 1
  .amdhsa_system_sgpr_workgroup_id_x 1
.end_amdhsa_kernel
"""


def header(launch_lines):
    ref = open(f"cdna_kernels/{NAME}.s.ref").read().split("\n")
    out = []
    for ln in ref:
        if not ln.startswith(";"): break
        if ln.startswith("; @launch"):
            out += launch_lines
        else:
            out.append(ln)
    return "\n".join(out) + "\n"


def build(NB=3):
    ks = []
    A = Asm(); prologue(A, "L_p1_end"); p1(A, 0); A("L_p1_end:\ns_endpgm"); ks.append(("p1_kernel", A.text(), 256, 32768))
    A = Asm(); prologue(A, "L_g1_end"); gemm1(A, NB); A("L_g1_end:\ns_endpgm"); ks.append(("g1_kernel", A.text(), 256, NB * 32768))
    A = Asm(); prologue(A, "L_cv_end"); conv(A, 0, "L_cv_end"); A("L_cv_end:\ns_endpgm"); ks.append(("cv_kernel", A.text(), 256, 3 * CH_BYTES))
    A = Asm(); prologue(A, "L_g2_end"); gemm2(A, 0); A("L_g2_end:\ns_endpgm"); ks.append((NAME + "_kernel", A.text(), 512, 102400))
    txt = header([f"; @launch kernel={k[0]} grid=(256,1,1) block=(256,1,1) lds={k[3]}" for k in ks])
    txt += '.amdgcn_target "amdgcn-amd-amdhsa--gfx950"\n.text\n'
    for k in ks: txt += kernel_text(k[0], k[1])
    txt += '.section .rodata,"a"\n'
    for k in ks: txt += desc(k[0], k[2], 256)
    return txt


if __name__ == "__main__":
    out = sys.argv[1] if len(sys.argv) > 1 else f"cdna_kernels/{NAME}.s"
    NB = int(sys.argv[2]) if len(sys.argv) > 2 else 3
    open(out, "w").write(build(NB))
```

```python
import re

REG_RE = re.compile(r"\b([vas])\[(\d+):(\d+)\]|\b([vas])(\d+)\b|\b(vcc|exec|m0|scc)\b|\b(vcc_lo|vcc_hi|exec_lo|exec_hi)\b")
TRANS = ("v_exp_f32", "v_log_f32", "v_rcp_f32", "v_rsq_f32", "v_sqrt_f32", "v_sin_f32", "v_cos_f32")


def regs_of(tok):
    out = set()
    for m in REG_RE.finditer(tok):
        if m.group(1):
            for i in range(int(m.group(2)), int(m.group(3)) + 1):
                out.add(m.group(1) + str(i))
        elif m.group(4):
            out.add(m.group(4) + m.group(5))
        elif m.group(6):
            out.add(m.group(6))
        elif m.group(7):
            out.add(m.group(7).split("_")[0])
    return out


class Ins:
    def __init__(self, text):
        self.text = text
        t = text.split(";")[0].strip()
        self.is_label = t.endswith(":")
        self.is_dir = t.startswith(".") or t == ""
        self.op = t.split()[0] if t else ""
        rest = t[len(self.op):]
        self.ops = [x.strip() for x in rest.split(",")] if rest.strip() else []
        op = self.op
        self.valu = op.startswith("v_")
        self.mfma = op.startswith("v_mfma")
        self.salu = op.startswith("s_")
        self.ds = op.startswith("ds_")
        self.vmem = op.startswith("buffer_") or op.startswith("global_")
        self.trans = any(op.startswith(x) for x in TRANS)
        self.dpp = ("row_" in t) or ("quad_perm" in t) or ("wave_" in t)
        self.lds_dma = self.vmem and re.search(r"\blds\b", t) is not None
        self.dst = set()
        self.src = set()
        self.mf_ab = set()
        self.mf_c = set()
        self.st_data = set()
        if self.is_label or self.is_dir:
            return
        o = self.ops
        if self.mfma:
            self.dst = regs_of(o[0]); self.mf_ab = regs_of(o[1]) | regs_of(o[2]); self.mf_c = regs_of(o[3])
            self.src = self.mf_ab | self.mf_c
            self.passes = 8 if "32x32x16" in op else 4
        elif self.valu:
            if op == "v_nop":
                pass
            else:
                self.dst = regs_of(o[0])
                for x in o[1:]:
                    self.src |= regs_of(x)
                if op.startswith("v_cndmask") and len(o) == 3:
                    self.src.add("vcc")
                if op.startswith(("v_fmac", "v_mac", "v_writelane", "v_dot2c", "v_pk_fmac")) or self.dpp or "d16" in op:
                    self.src |= self.dst
                if op.startswith(("v_add_co", "v_sub_co", "v_addc_co", "v_subb_co")):
                    self.dst |= regs_of(o[1])
                if op.startswith("v_permlane") and "swap" in op:
                    self.dst |= regs_of(o[1]); self.src |= regs_of(o[0])
        elif self.ds:
            if op.startswith("ds_read") or op.startswith("ds_bpermute") or op.startswith("ds_swizzle"):
                self.dst = regs_of(o[0])
                for x in o[1:]:
                    self.src |= regs_of(x)
            else:
                for x in o:
                    self.src |= regs_of(x)
        elif self.vmem:
            if "store" in op or ("atomic" in op):
                for x in o:
                    self.src |= regs_of(x)
                if "x4" in op or "x3" in op:
                    self.st_data = regs_of(o[0]) if op.startswith("buffer") else regs_of(o[1])
            elif self.lds_dma:
                for x in o:
                    self.src |= regs_of(x)
                self.src.add("m0")
            elif op.startswith("buffer_inv") or op.startswith("buffer_wbl2"):
                pass
            else:
                self.dst = regs_of(o[0])
                for x in o[1:]:
                    self.src |= regs_of(x)
        elif self.salu:
            if op.startswith(("s_cmp", "s_cbranch", "s_branch", "s_waitcnt", "s_barrier", "s_nop", "s_endpgm",
                              "s_setprio", "s_sleep", "s_bitcmp")):
                for x in o:
                    self.src |= regs_of(x)
            else:
                self.dst = regs_of(o[0])
                for x in o[1:]:
                    self.src |= regs_of(x)
                if "saveexec" in op:
                    self.dst.add("exec")

    def states(self):
        if self.is_label or self.is_dir:
            return 0
        if self.op == "s_nop":
            return int(self.ops[0], 0) + 1
        return 1


def isv(r):
    return r[0] in "va" and r[1:].isdigit()


def iss(r):
    return (r[0] == "s" and r[1:].isdigit()) or r == "vcc"


def need(p, c):
    n = 0
    pv = {r for r in p.dst if isv(r)}
    ps = {r for r in p.dst if iss(r)}
    if p.mfma:
        k = 8 if p.passes == 4 else 12
        if c.mfma:
            if p.dst & c.mf_ab: n = max(n, k)
            if p.dst & c.mf_c and not (p.dst == c.mf_c and p.passes == c.passes): n = max(n, k - 2)
            if p.dst & c.dst and not (p.dst == c.mf_c): n = max(n, k)
        elif c.valu or c.vmem or c.ds:
            if p.dst & (c.src | c.dst): n = max(n, k)
        if c.valu and not c.mfma and (p.mf_c & c.dst): n = max(n, 3 if p.passes == 4 else 7)
    elif p.valu:
        if c.mfma and (pv & c.src): n = max(n, 2)
        if c.valu and c.op.startswith(("v_readfirstlane", "v_readlane")) and (pv & c.src): n = max(n, 1)
        if c.valu and c.dpp and (pv & c.src): n = max(n, 2)
        if c.valu and c.op.startswith("v_permlane") and (pv & c.src): n = max(n, 2)
        if p.trans and c.valu and (pv & c.src): n = max(n, 1)
        if ("op_sel" in p.text or "sdwa" in p.text or "d16" in p.op) and c.valu and (pv & (c.src | c.dst)): n = max(n, 1)
        if ps:
            if c.valu and (ps & c.src):
                n = max(n, 4 if c.op.startswith(("v_readlane", "v_writelane")) else 2)
            if c.vmem and (ps & c.src): n = max(n, 5)
            if c.salu and (ps & c.src): n = max(n, 1)
        if "exec" in p.dst:
            n = max(n, 5) if (c.valu or c.vmem or c.ds) else n
    elif p.salu:
        if "m0" in p.dst and c.lds_dma: n = max(n, 1)
    if p.st_data and (c.valu or c.ds or c.vmem) and (p.st_data & c.dst): n = max(n, 2)
    return n


class Asm:
    def __init__(self):
        self.l = []

    def __call__(self, s):
        for line in s.split("\n"):
            line = line.strip()
            if line:
                self.l.append(line)

    def text(self):
        out = []
        for t in self.l:
            c = Ins(t)
            if not (c.is_label or c.is_dir):
                dist = 0
                req = 0
                for p in reversed(out):
                    if dist >= 12:
                        break
                    if p.is_label or p.is_dir:
                        continue
                    r = need(p, c) - dist
                    req = max(req, r)
                    dist += p.states()
                if req > 0:
                    out.append(Ins(f"s_nop {req - 1}"))
            out.append(c)
        return "\n".join(("" if (i.is_label or i.text.startswith(".")) else "  ") + i.text for i in out) + "\n"


def interleave(main, fill, per=1, start=0):
    out = []
    fi = 0
    for i, m in enumerate(main):
        out.append(m)
        if i >= start:
            for _ in range(per):
                if fi < len(fill):
                    out.append(fill[fi]); fi += 1
    out.extend(fill[fi:])
    return out


def resolve_waits(lines):
    out = []
    vm = []
    for ln in lines:
        if ln.startswith("@wait"):
            parts = ln.split()
            extra = ""
            tags = []
            for p in parts[1:]:
                if p.startswith("+"):
                    extra = " " + p[1:]
                else:
                    tags.append(p)
            idx = -1
            for t in tags:
                hit = [i for i, x in enumerate(vm) if t in x[0]]
                assert hit, f"tag {t} not issued before wait"
                idx = max(idx, hit[-1])
            n = sum(1 for x in vm[idx + 1:] if not x[1])
            out.append(f"s_waitcnt vmcnt({min(n, 63)}){extra}")
            continue
        code = ln.split(";")[0].strip()
        if code.startswith(("buffer_", "global_")):
            tags = re.findall(r";@(\w+)", ln)
            vm.append((set(tags), "opt" in tags))
        out.append(ln)
    return out
```

```python
import sys, os
sys.path.insert(0, os.path.dirname(__file__))
from asmlib import Asm, interleave

NAME = "gated_mix__ssm_conv_h3__dense_activation_silu__prompt"
U_OFF = 0
W2F_OFF = 5242880
HF_OFF = 7208960
Y_OFF = 13500416
G_OFF = 16121856
FLAG_OFF = 16138240
WS_SIZE = 16154624

SX, SK_, SV, SSK, SH, SW1, SW2, SGW, SOUT, SWS = 8, 12, 16, 20, 24, 28, 32, 36, 40, 44
RB, CB, W = "s4", "s5", "s6"


def srd(b): return f"s[{b}:{b+3}]"
def v(b, n=1): return f"v{b}" if n == 1 else f"v[{b}:{b+n-1}]"
def a(b, n=1): return f"a{b}" if n == 1 else f"a[{b}:{b+n-1}]"


def prologue(A, end):
    A(f"s_cmp_ge_u32 s2, 256\ns_cbranch_scc1 {end}")
    stamp_begin(A)
    A("s_load_dwordx16 s[48:63], s[0:1], 0\ns_load_dwordx8 s[64:71], s[0:1], 64\ns_load_dwordx2 s[72:73], s[0:1], 96")
    A("v_lshrrev_b32 v1, 6, v0\nv_and_b32 v0, 63, v0\nv_readfirstlane_b32 s6, v1")
    A("s_lshr_b32 s3, s2, 3\ns_and_b32 s7, s2, 7")
    A("s_lshr_b32 s4, s7, 1\ns_lshl_b32 s4, s4, 3\ns_lshr_b32 s5, s3, 2\ns_add_u32 s4, s4, s5")
    A("s_and_b32 s5, s7, 1\ns_lshl_b32 s5, s5, 2\ns_and_b32 s3, s3, 3\ns_add_u32 s5, s5, s3")
    for b, n in ((SX, 2621440), (SK_, 2621440), (SV, 2621440), (SSK, 5120), (SH, 2621440), (SW1, 1966080),
                 (SW2, 1966080), (SGW, 1280), (SOUT, 2621440), (SWS, WS_SIZE)):
        A(f"s_mov_b32 s{b+2}, {n}\ns_mov_b32 s{b+3}, 0x00020000")
    A("s_waitcnt lgkmcnt(0)")
    for b, p in ((SX, 48), (SK_, 50), (SV, 52), (SSK, 54), (SH, 56), (SW1, 62), (SW2, 64), (SGW, 66), (SOUT, 68),
                 (SWS, 72)):
        A(f"s_mov_b32 s{b}, s{p}\ns_mov_b32 s{b+1}, s{p+1}")


STAMPS = False
STAMP_OFF = 16154624


def stamp(A, i):
    if STAMPS:
        A(f"s_memtime s[92:93]\ns_waitcnt lgkmcnt(0)\ns_mov_b32 s{94+i}, s92")


def stamp_begin(A):
    if STAMPS:
        A("s_memrealtime s[92:93]\ns_waitcnt lgkmcnt(0)\ns_mov_b32 s91, s92")
        for i in range(8): A(f"s_mov_b32 s{94+i}, 0")
        stamp(A, 0)


def stamp_end(A, kidx):
    if STAMPS:
        A("s_waitcnt vmcnt(0)")
        stamp(A, 7)
        A("s_memrealtime s[92:93]\ns_waitcnt lgkmcnt(0)")
        A("s_mov_b64 exec, -1\nv_mov_b32 v1, 0")
        for i in range(8): A(f"v_writelane_b32 v1, s{94+i}, {i}")
        A("v_writelane_b32 v1, s91, 8\nv_writelane_b32 v1, s92, 9")
        A("s_getreg_b32 s92, hwreg(HW_REG_XCC_ID)\nv_writelane_b32 v1, s92, 10")
        A("s_getreg_b32 s92, hwreg(HW_REG_HW_ID)\nv_writelane_b32 v1, s92, 11")
        A(f"s_lshl_b32 s92, s2, 2\ns_add_u32 s92, s92, s6\ns_lshl_b32 s92, s92, 6\ns_add_u32 s92, s92, {STAMP_OFF + kidx*65536}")
        A(f"v_lshlrev_b32 v2, 2, v0\ns_mov_b32 s{SWS+2}, {STAMP_OFF + 8*65536}\ns_mov_b64 exec, 0xffff")
        A(f"buffer_store_dword v1, v2, {srd(SWS)}, s92 offen")


def unpack(A, d, s):
    A(f"v_lshlrev_b32 v{d}, 16, v{s}\nv_and_b32 v{d+1}, 0xffff0000, v{s}")


def p1(A, L0, st=""):
    KIMG, VIMG, W2IMG = L0, L0 + 11136, L0 + 22272
    A("v_mul_u32_u24 v1, 205, v0\nv_lshrrev_b32 v1, 11, v1\nv_mul_u32_u24 v2, 10, v1\nv_sub_u32 v2, v0, v2")
    A("v_mul_u32_u24 v3, 1280, v1\nv_lshl_add_u32 v3, v2, 4, v3")
    A("s_mul_i32 s7, s4, 81920\ns_mul_i32 s3, s5, 160\ns_add_u32 s7, s7, s3")
    A("s_and_b32 s74, s6, 1\ns_mul_i32 s75, s74, 40960\ns_add_u32 s75, s75, s7")
    A("v_add_u32 v5, s75, v3\nv_subrev_u32 v4, 5120, v5")
    A("s_cmp_lt_u32 s6, 2")
    A(f"s_cselect_b32 s76, s{SK_}, s{SV}\ns_cselect_b32 s77, s{SK_+1}, s{SV+1}")
    A("s_mov_b32 s78, 2621440\ns_mov_b32 s79, 0x00020000")
    A(f"s_cselect_b32 s80, {KIMG}, {VIMG}\ns_mul_i32 s74, s74, 5248\ns_add_u32 s80, s80, s74")
    A("s_mov_b32 exec_lo, -1\ns_mov_b32 exec_hi, 0xff")
    for i in range(9):
        A(f"s_add_u32 m0, s80, {(i >> 1) * 1312 + (i & 1) * 640}")
        if i == 0:
            A("buffer_load_dwordx4 v4, s[76:79], 0 offen lds")
        else:
            A(f"s_mov_b32 s81, {(i - 1) * 5120}")
            A("buffer_load_dwordx4 v5, s[76:79], s81 offen lds")
    A("s_mov_b64 exec, -1")
    A("s_cmp_lt_u32 s4, 8\ns_cbranch_scc1 L_p1_now2a")
    A("s_sub_u32 s82, s7, 655360")
    for t in range(3):
        if t == 2:
            A("s_cmp_ge_u32 s6, 2\ns_cbranch_scc1 L_p1_now2a")
        A(f"s_lshl_b32 s83, s6, 6\ns_add_u32 s83, s83, {256 * t}")
        A("v_add_u32 v6, s83, v0\nv_mul_u32_u24 v7, 6554, v6\nv_lshrrev_b32 v7, 16, v7")
        A("v_mul_u32_u24 v8, 10, v7\nv_sub_u32 v8, v6, v8\nv_mul_u32_u24 v7, 1280, v7\nv_lshl_add_u32 v7, v8, 4, v7")
        A(f"s_lshl_b32 s83, s83, 4\ns_add_u32 m0, s83, {W2IMG}")
        A(f"buffer_load_dwordx4 v7, {srd(SW2)}, s82 offen lds")
    A("L_p1_now2a:")
    A("v_lshrrev_b32 v9, 3, v0\nv_lshlrev_b32 v9, 5, v9")
    A("s_mul_i32 s83, s5, 640\ns_mul_i32 s84, s6, 160\ns_add_u32 s83, s83, s84")
    A(f"buffer_load_dwordx4 v[10:13], v9, {srd(SSK)}, s83 offen")
    A(f"buffer_load_dwordx4 v[14:17], v9, {srd(SSK)}, s83 offen offset:16")
    A("v_and_b32 v18, 31, v0\nv_lshlrev_b32 v18, 3, v18\nv_lshrrev_b32 v19, 5, v0\nv_mul_u32_u24 v19, 1280, v19\nv_add_u32 v19, v19, v18")
    A("s_lshl_b32 s84, s4, 6\ns_lshl_b32 s85, s5, 3\ns_add_u32 s84, s84, s85\ns_lshl_b32 s85, s6, 1\ns_add_u32 s84, s84, s85")
    A("s_mul_i32 s85, s84, 1280")
    for j in range(5):
        A(f"buffer_load_dwordx2 v[{20+2*j}:{21+2*j}], v19, {srd(SX)}, s85 offen offset:{256*j}")
    for j in range(5):
        A(f"buffer_load_dwordx2 v[{30+2*j}:{31+2*j}], v18, {srd(SGW)}, 0 offen offset:{256*j}")
    stamp(A, 1)
    A("s_waitcnt vmcnt(0)\ns_barrier")
    stamp(A, 2)
    A("v_and_b32 v6, 7, v0\nv_mul_u32_u24 v6, 1312, v6\nv_lshrrev_b32 v7, 3, v0\nv_lshl_add_u32 v6, v7, 3, v6")
    A("s_mul_i32 s83, s6, 40\nv_add_u32 v6, s83, v6")
    ko = lambda i: (i >> 3) * 1312 + (i & 7) * 160
    for i in range(12):
        A(f"ds_read_b64 v[{40+2*i}:{41+2*i}], v6 offset:{KIMG + ko(i)}")
    for i in range(3, 12):
        A(f"ds_read_b64 v[{64+2*(i-3)}:{65+2*(i-3)}], v6 offset:{VIMG + ko(i)}")
    for j in range(10):
        unpack(A, 84, 20 + j); unpack(A, 86, 30 + j)
        A("v_pk_mul_f32 v[84:85], v[84:85], v[86:87]")
        A(f"v_cvt_pk_bf16_f32 v{20+j}, v84, v85")
    unpack(A, 84, 20)
    for j in range(1, 10):
        unpack(A, 86, 20 + j)
        A("v_pk_add_f32 v[84:85], v[84:85], v[86:87]")
    A("v_add_f32 v84, v84, v85")
    for sh in (8, 4, 2, 1):
        A(f"v_add_f32_dpp v84, v84, v84 row_ror:{sh} row_mask:0xf bank_mask:0xf")
    A("v_add_f32_dpp v84, v84, v84 row_bcast:15 row_mask:0xa bank_mask:0xf")
    A("v_cvt_pk_bf16_f32 v84, v84, v84\nv_lshlrev_b32 v84, 16, v84")
    A("v_mul_f32 v84, 0xbfb8aa3b, v84\nv_exp_f32 v84, v84\nv_add_f32 v84, 1.0, v84\nv_rcp_f32 v84, v84")
    A("v_cvt_pk_bf16_f32 v84, v84, v84\nv_lshlrev_b32 v84, 16, v84")
    A("v_sub_f32 v85, 1.0, v84\nv_cvt_pk_bf16_f32 v85, v85, v85\nv_lshlrev_b32 v85, 16, v85")
    A("v_lshrrev_b32 v86, 5, v0\nv_lshlrev_b32 v86, 3, v86")
    A(f"s_lshl_b32 s85, s84, 3\ns_add_u32 s85, s85, {G_OFF}")
    A("s_mov_b32 exec_lo, 0x10000\ns_mov_b32 exec_hi, 0x10000")
    A(f"buffer_store_dwordx2 v[84:85], v86, {srd(SWS)}, s85 offen{st}")
    A("s_mov_b64 exec, -1")
    for c in range(4):
        A(f"v_lshlrev_b32 v{90+c}, 16, v{10+2*c}\nv_and_b32 v{94+c}, 0xffff0000, v{10+2*c}")
        A(f"v_lshlrev_b32 v{98+c}, 16, v{11+2*c}\nv_and_b32 v{102+c}, 0xffff0000, v{11+2*c}")
    A("s_cmp_lt_u32 s4, 8\ns_cbranch_scc1 L_p1_now2b")
    A("v_lshrrev_b32 v7, 2, v0\nv_mul_u32_u24 v7, 160, v7\nv_and_b32 v8, 3, v0\nv_lshl_add_u32 v7, v8, 3, v7")
    for t in range(3):
        A(f"s_add_u32 s83, s6, {4*t}\ns_lshl_b32 s86, s83, 5\ns_cmp_ge_u32 s83, 5\ns_cselect_b32 s87, 4960, 0\ns_add_u32 s86, s86, s87")
        A("v_add_u32 v8, s86, v7")
        A(f"ds_read_b64_tr_b16 v[{200+4*t}:{201+4*t}], v8 offset:{W2IMG}")
        A(f"ds_read_b64_tr_b16 v[{202+4*t}:{203+4*t}], v8 offset:{W2IMG + 2560}")
    A("L_p1_now2b:")
    A("s_waitcnt lgkmcnt(0)")
    for i in range(12):
        unpack(A, 108 + 4 * i, 40 + 2 * i); unpack(A, 110 + 4 * i, 41 + 2 * i)
    for ip in range(9):
        for hf in range(2):
            o = 156 + 4 * ip + 2 * hf
            for j in range(4):
                kr = 108 + 4 * (ip + 3 - j) + 2 * hf
                tr = 90 + 4 * j + 2 * hf
                if j == 0:
                    A(f"v_pk_mul_f32 v[{o}:{o+1}], v[{kr}:{kr+1}], v[{tr}:{tr+1}]")
                else:
                    A(f"v_pk_fma_f32 v[{o}:{o+1}], v[{kr}:{kr+1}], v[{tr}:{tr+1}], v[{o}:{o+1}]")
            unpack(A, 84, 64 + 2 * ip + hf)
            A(f"v_pk_mul_f32 v[{o}:{o+1}], v[{o}:{o+1}], v[84:85]")
    stamp(A, 3)
    A("v_lshrrev_b32 v7, 3, v0\nv_lshlrev_b32 v7, 15, v7\nv_and_b32 v8, 7, v0\nv_lshl_add_u32 v7, v8, 4, v7")
    A(f"s_mul_i32 s83, s5, {80*8192}\ns_mul_i32 s86, s6, {20*8192}\ns_add_u32 s83, s83, s86\ns_lshl_b32 s86, s4, 7\ns_add_u32 s83, s83, s86")
    if U_OFF: A(f"s_add_u32 s83, s83, {U_OFF}")
    A("s_mov_b32 exec_lo, -1\ns_mov_b32 exec_hi, 0xff")
    for c in range(4):
        for rho in range(2):
            d = 40 + 4 * (2 * c + rho)
            for q in range(4):
                A(f"v_cvt_pk_bf16_f32 v{d+q}, v{156 + 4*(7+rho-2*q) + c}, v{156 + 4*(6+rho-2*q) + c}")
            A(f"s_add_u32 s86, s83, {c*8192 + rho*4096}")
            A(f"buffer_store_dwordx4 v[{d}:{d+3}], v7, {srd(SWS)}, s86 offen{st}")
    A("s_mov_b64 exec, -1")
    A("s_cmp_lt_u32 s4, 8\ns_cbranch_scc1 L_p1_now2c")
    A(f"s_mul_i32 s83, s5, 240\ns_mul_i32 s86, s4, 10\ns_add_u32 s83, s83, s86\ns_add_u32 s83, s83, s6\ns_lshl_b32 s83, s83, 10\ns_add_u32 s83, s83, {W2F_OFF - 80*1024}")
    A("v_lshlrev_b32 v8, 4, v0")
    for t in range(3):
        if t == 2:
            A("s_cmp_ge_u32 s6, 2\ns_cbranch_scc1 L_p1_now2c")
        A(f"s_add_u32 s86, s83, {4096*t}")
        A(f"buffer_store_dwordx4 v[{200+4*t}:{203+4*t}], v8, {srd(SWS)}, s86 offen{st}")
    A("L_p1_now2c:")
    stamp(A, 4)


G1_ACC = 16
G1_WF = (64, 88)
G1_XF = (112, 120)
G1_WV = 128
G1_XV = 134
G1_RA = 136


def g1_setup(A, NB):
    A("s_mul_i32 s74, s6, 49152\ns_mul_i32 s75, s5, 384\ns_add_u32 s74, s74, s75")
    for j in range(6):
        A(f"v_add_u32 v1, {64*j}, v0\nv_mul_u32_u24 v2, 2731, v1\nv_lshrrev_b32 v2, 16, v2")
        A("v_mul_u32_u24 v3, 24, v2\nv_sub_u32 v3, v1, v3")
        A("v_and_b32 v4, 2, v2\nv_lshrrev_b32 v5, 1, v2\nv_and_b32 v5, 4, v5\nv_or_b32 v4, v4, v5")
        A("v_xor_b32 v3, v3, v4\nv_mul_u32_u24 v2, 3072, v2\nv_lshl_add_u32 v2, v3, 4, v2")
        A(f"v_add_u32 v{G1_WV+j}, s74, v2")
    A("v_lshrrev_b32 v1, 3, v0\nv_and_b32 v2, 7, v0\nv_xor_b32 v2, v2, v1")
    A("v_lshrrev_b32 v3, 2, v1\nv_lshlrev_b32 v3, 1, v3\nv_and_b32 v4, 1, v1\nv_or_b32 v3, v3, v4")
    A("v_and_b32 v4, 2, v1\nv_lshl_add_u32 v3, v4, 4, v3")
    A("v_mul_u32_u24 v3, 1280, v3\nv_lshl_add_u32 v3, v2, 4, v3")
    A("s_mul_i32 s74, s4, 81920\ns_mul_i32 s75, s6, 10240\ns_add_u32 s74, s74, s75")
    A(f"v_add_u32 v{G1_XV}, s74, v3\nv_add_u32 v{G1_XV+1}, 5120, v{G1_XV}")
    A("v_lshrrev_b32 v1, 4, v0\nv_lshrrev_b32 v2, 2, v0\nv_and_b32 v2, 3, v2")
    A("v_lshl_add_u32 v3, v1, 3, v2\nv_mul_u32_u24 v3, 384, v3\nv_and_b32 v4, 3, v0\nv_lshl_add_u32 v3, v4, 3, v3")
    A("v_lshrrev_b32 v4, 1, v2\nv_and_b32 v5, 1, v1\nv_lshl_add_u32 v4, v5, 1, v4")
    A("s_and_b32 s74, s6, 1\ns_mul_i32 s74, s74, 6")
    for t in range(6):
        A(f"s_add_u32 s75, s74, {t}\nv_xor_b32 v5, s75, v4\nv_lshl_add_u32 v{G1_RA+t}, v5, 5, v3")
    A("v_and_b32 v2, 15, v0\nv_and_b32 v3, 7, v0\nv_xor_b32 v3, v3, v1\nv_lshlrev_b32 v2, 7, v2")
    A("s_lshr_b32 s74, s6, 1\ns_lshl_b32 s74, s74, 12\ns_add_u32 s74, s74, 24576")
    A(f"v_add_u32 v2, s74, v2\nv_lshl_add_u32 v{G1_RA+6}, v3, 4, v2\nv_xor_b32 v{G1_RA+7}, 64, v{G1_RA+6}")
    for s in range(1, (NB + 1) // 2):
        for i in range(8):
            A(f"v_add_u32 v{G1_RA+8*s+i}, {65536*s}, v{G1_RA+i}")
    A("s_mul_i32 s88, s6, 6144\ns_lshl_b32 s89, s6, 11\ns_add_u32 s89, s89, 24576")
    for i in range(48):
        A(f"v_mov_b32 v{G1_ACC+i}, 0")


def g1_dma(stage, NB):
    buf = stage % NB
    out = []
    for j in range(2):
        out.append(f"s_add_u32 m0, s89, {buf*32768 + j*1024}\ns_mov_b32 s90, {stage*128}\n"
                   f"buffer_load_dwordx4 v{G1_XV+j}, {srd(SX)}, s90 offen lds")
    for j in range(6):
        out.append(f"s_add_u32 m0, s88, {buf*32768 + j*1024}\ns_mov_b32 s90, {stage*196608}\n"
                   f"buffer_load_dwordx4 v{G1_WV+j}, {srd(SW1)}, s90 offen lds")
    return out


def g1_reads(stage, kk, NB):
    buf = stage % NB
    ra = G1_RA + 8 * (buf >> 1)
    bo = (buf & 1) * 32768
    out = []
    for st2 in range(2):
        out.append(f"ds_read_b128 {v(G1_XF[kk] + 4*st2, 4)}, v{ra+6+kk} offset:{bo + st2*2048}")
    for t in range(6):
        for h in range(2):
            out.append(f"ds_read_b64_tr_b16 {v(G1_WF[kk] + 4*t + 2*h, 2)}, v{ra+t} offset:{bo + kk*12288 + h*1536}")
    return out


def g1_mfmas(kk):
    out = []
    for t in range(6):
        for st2 in range(2):
            d = G1_ACC + (st2 * 6 + t) * 4
            out.append(f"v_mfma_f32_16x16x32_bf16 {v(d,4)}, {v(G1_WF[kk]+4*t,4)}, {v(G1_XF[kk]+4*st2,4)}, {v(d,4)}")
    return out


def mix(mf, reads, dmas):
    out = []
    ri = 0
    for i, m in enumerate(mf):
        if i % 3 == 0 and dmas:
            out.append(dmas.pop(0))
        out.append(m)
        for _ in range(2):
            if ri < len(reads):
                out.append(reads[ri]); ri += 1
    out.extend(reads[ri:])
    out.extend(dmas)
    return out


def gemm1(A, NB, st=""):
    NS = 10
    g1_setup(A, NB)
    stamp(A, 1)
    for s in range(NB - 1):
        for g in g1_dma(s, NB): A(g)
    for t in range(NS):
        issued = min(NS, t + NB - 1)
        A(f"s_waitcnt vmcnt({8 * (issued - t - 1)})\ns_barrier")
        if t in (0, 1, 5): stamp(A, {0: 2, 1: 3, 5: 4}[t])
        d = g1_dma(t + NB - 1, NB) if t + NB - 1 < NS else []
        if t == 0:
            for x in g1_reads(0, 0, NB): A(x)
            for x in d[:4]: A(x)
        else:
            for x in mix(g1_mfmas(1), g1_reads(t, 0, NB), d[:4]): A(x)
        A("s_waitcnt lgkmcnt(0)")
        for x in mix(g1_mfmas(0), g1_reads(t, 1, NB), d[4:]): A(x)
        A("s_waitcnt lgkmcnt(0)")
    for x in g1_mfmas(1): A(x)
    stamp(A, 5)
    A("v_lshlrev_b32 v1, 4, v0")
    A("s_mul_i32 s74, s4, 48\ns_mul_i32 s75, s5, 6\ns_add_u32 s74, s74, s75\ns_and_b32 s75, s6, 1\ns_mul_i32 s75, s75, 3\ns_add_u32 s74, s74, s75")
    A(f"s_lshl_b32 s74, s74, 2\ns_and_b32 s75, s6, 2\ns_add_u32 s74, s74, s75\ns_lshl_b32 s74, s74, 10\ns_add_u32 s74, s74, {HF_OFF}")
    A("s_mov_b32 s76, 0xbfb8aa3b\ns_mov_b32 s77, 0xbfb8aa3b\ns_mov_b32 s78, 1.0\ns_mov_b32 s79, 1.0")
    for tp in range(3):
        for st2 in range(2):
            d = G1_ACC + (st2 * 6 + 2 * tp) * 4
            T = 64 + ((tp * 2 + st2) & 1) * 16
            for q in range(4):
                A(f"v_pk_mul_f32 {v(T+2*q,2)}, {v(d+2*q,2)}, s[76:77]")
            for q in range(8):
                A(f"v_exp_f32 v{T+q}, v{T+q}")
            for q in range(4):
                A(f"v_pk_add_f32 {v(T+2*q,2)}, {v(T+2*q,2)}, s[78:79]")
            for q in range(8):
                A(f"v_rcp_f32 v{T+q}, v{T+q}")
            for q in range(4):
                A(f"v_pk_mul_f32 {v(T+2*q,2)}, {v(T+2*q,2)}, {v(d+2*q,2)}")
            for q in range(4):
                A(f"v_cvt_pk_bf16_f32 v{T+8+q}, v{T+2*q}, v{T+2*q+1}")
            A(f"s_add_u32 s75, s74, {tp*4096 + st2*1024}")
            A(f"buffer_store_dwordx4 {v(T+8,4)}, v1, {srd(SWS)}, s75 offen{st}")
    stamp(A, 6)


CV_ACC = 16
CV_U = (48, 80)
CV_H = (112, 144)
CH_BYTES = 17536


def conv(A, L0, end, st="", ld=""):
    A(f"s_lshl_b32 s74, s6, 5\ns_add_u32 s74, s74, s4\ns_cmp_ge_u32 s74, 80\ns_cbranch_scc1 {end}")
    A("s_mul_i32 s75, s5, 80\ns_add_u32 s74, s74, s75")
    A("s_lshl_b32 s75, s74, 12\ns_add_u32 s76, s56, s75\ns_addc_u32 s77, s57, 0\ns_load_dwordx2 s[78:79], s[76:77], 0")
    A("s_lshl_b32 s80, s74, 1\ns_and_b32 s80, s80, -4\ns_load_dword s81, s[58:59], s80")
    A(f"s_mul_i32 s82, s6, {CH_BYTES}\ns_add_u32 s82, s82, {L0}")
    A("v_lshlrev_b32 v1, 4, v0")
    A(f"s_lshl_b32 s83, s74, 13")
    if U_OFF: A(f"s_add_u32 s83, s83, {U_OFF}")
    A("s_add_u32 s84, s83, 4096\ns_add_u32 s85, s75, 8\ns_add_u32 s86, s75, 4")
    for base, so, sr, f in ((448, "s83", SWS, ld), (9152 + 64, "s85", SH, ""), (4576 + 448, "s84", SWS, ld),
                            (9152 + 4224 + 64, "s86", SH, "")):
        A(f"s_add_u32 m0, s82, {base}")
        for j in range(4):
            A(f"buffer_load_dwordx4 v1, {srd(sr)}, {so} offen offset:{1024*j} lds{f}")
    A("v_mov_b32 v4, 0\nv_mov_b32 v5, 0\nv_mov_b32 v6, 0\nv_mov_b32 v7, 0")
    A("v_lshrrev_b32 v2, 5, v0\nv_mul_u32_u24 v2, 4576, v2\nv_and_b32 v3, 31, v0\nv_lshl_add_u32 v2, v3, 4, v2\nv_add_u32 v2, s82, v2")
    A("s_mov_b32 exec_lo, 0x0fffffff\ns_mov_b32 exec_hi, 0x0fffffff")
    A("ds_write_b128 v2, v[4:7]")
    A("s_mov_b64 exec, -1")
    for i in range(32):
        A(f"v_mov_b32 v{CV_ACC+i}, 0")
    A("v_and_b32 v2, 1, v0\nv_mul_u32_u24 v2, 4576, v2\nv_and_b32 v3, 14, v0\nv_lshl_add_u32 v2, v3, 5, v2")
    A("v_lshrrev_b32 v3, 4, v0\nv_lshlrev_b32 v8, 4, v3\nv_sub_u32 v2, v2, v8\ns_add_u32 s87, s82, 48\nv_add_u32 v10, s87, v2")
    A("v_and_b32 v2, 15, v0\nv_lshlrev_b32 v2, 2, v2\nv_add_u32 v2, v2, v8")
    A("v_and_b32 v3, 1, v0\nv_mul_u32_u24 v3, 4228, v3\nv_sub_u32 v2, v2, v3")
    A(f"s_add_u32 s87, s82, {9152 + 4224}\nv_add_u32 v11, s87, v2")
    A("s_waitcnt lgkmcnt(0)")
    A("s_bitcmp1_b32 s74, 0\ns_cselect_b32 s80, 0, 16\ns_lshl_b32 s81, s81, s80\ns_and_b32 s81, s81, 0xffff0000")
    A("s_lshl_b32 s80, s78, 16\nv_mov_b32 v2, s80\nv_add_f32 v2, s81, v2\ns_and_b32 s80, s78, 0xffff0000\nv_mov_b32 v3, s80")
    A("v_cvt_pk_bf16_f32 v2, v2, v3\nv_readfirstlane_b32 s80, v2")
    A("v_writelane_b32 v4, s80, 14\nv_writelane_b32 v4, s79, 15\nv_writelane_b32 v4, s80, 31")
    A("v_lshrrev_b32 v2, 4, v0\nv_mul_u32_u24 v2, 4224, v2\nv_and_b32 v3, 15, v0\nv_lshl_add_u32 v2, v3, 2, v2")
    A("s_add_u32 s87, s82, 9152\nv_add_u32 v2, s87, v2")
    A("s_mov_b32 exec_lo, -1\ns_mov_b32 exec_hi, 0")
    A("ds_write_b32 v2, v4")
    A("s_mov_b64 exec, -1")
    stamp(A, 1)
    A("s_waitcnt vmcnt(0) lgkmcnt(0)")
    stamp(A, 2)

    def reads(r):
        s = r & 1
        out = []
        for p in range(8):
            out.append(f"ds_read_b128 {v(CV_U[s]+4*p,4)}, v10 offset:{512*p + 64*r}")
            for h in range(2):
                out.append(f"ds_read_b64 {v(CV_H[s]+4*p+2*h,2)}, v11 offset:{64*(7-r) + 512*p + 8*h}")
        return out

    def mfmas(r):
        s = r & 1
        out = []
        for Ap in range(8):
            for p in range(Ap + 1):
                d = CV_ACC + 4 * Ap
                out.append(f"v_mfma_f32_16x16x32_bf16 {v(d,4)}, {v(CV_U[s]+4*p,4)}, {v(CV_H[s]+4*(Ap-p),4)}, {v(d,4)}")
        return out

    for x in reads(0): A(x)
    for r in range(8):
        A("s_waitcnt lgkmcnt(0)")
        if r in (1, 4): stamp(A, {1: 3, 4: 4}[r])
        for x in interleave(mfmas(r), reads(r + 1) if r < 7 else [], per=1): A(x)
    stamp(A, 5)
    A("v_lshlrev_b32 v1, 3, v0")
    A(f"s_add_u32 s75, s75, {Y_OFF}")
    for Ap in range(8):
        d = CV_ACC + 4 * Ap
        A(f"v_cvt_pk_bf16_f32 v{48+2*Ap}, v{d}, v{d+1}\nv_cvt_pk_bf16_f32 v{49+2*Ap}, v{d+2}, v{d+3}")
        A(f"buffer_store_dwordx2 {v(48+2*Ap,2)}, v1, {srd(SWS)}, s75 offen offset:{512*Ap}{st}")


G2_ACC = 16
G2_HF = 96
G2_NH = 40


def gemm2(A, L0, ld=""):
    RED, YIMG, QIMG = L0, L0 + 81920, L0 + 92160
    A("v_lshlrev_b32 v1, 4, v0")
    A(f"s_mul_i32 s74, s5, 240\ns_mul_i32 s75, s6, 60\ns_add_u32 s74, s74, s75\ns_lshl_b32 s74, s74, 10\ns_add_u32 s74, s74, {W2F_OFF}")
    A(f"s_mul_i32 s75, s4, 48\ns_mul_i32 s76, s6, 12\ns_add_u32 s75, s75, s76\ns_lshl_b32 s75, s75, 12\ns_add_u32 s75, s75, {HF_OFF}")

    def wload(i):
        return (f"s_add_u32 s77, s74, {(i >> 2) * 4096}\n" if i % 4 == 0 else "") + \
            f"buffer_load_dwordx4 {a(4*i,4)}, v1, {srd(SWS)}, s77 offen offset:{(i & 3) * 1024}{ld}"

    def hload(i):
        return (f"s_add_u32 s78, s75, {(i >> 2) * 4096}\n" if i % 4 == 0 else "") + \
            f"buffer_load_dwordx4 {v(G2_HF + 4*(i % G2_NH),4)}, v1, {srd(SWS)}, s78 offen offset:{(i & 3) * 1024}{ld}"

    A("v_mul_u32_u24 v2, 205, v0\nv_lshrrev_b32 v2, 11, v2\nv_mul_u32_u24 v3, 10, v2\nv_sub_u32 v3, v0, v3")
    A("v_mul_u32_u24 v2, 1280, v2\nv_lshl_add_u32 v2, v3, 4, v2")
    A("s_mul_i32 s80, s4, 81920\ns_mul_i32 s81, s5, 160\ns_add_u32 s80, s80, s81\ns_mul_i32 s81, s6, 10240\ns_add_u32 s80, s80, s81")
    A("v_add_u32 v2, s80, v2")
    A(f"s_mul_i32 s81, s6, 1280\ns_add_u32 s81, s81, {QIMG}")
    A("s_mov_b32 exec_lo, -1\ns_mov_b32 exec_hi, 0xff")
    for i, ro in enumerate((0, 4, 32, 36)):
        A(f"s_add_u32 m0, s81, {ro*160}\ns_mov_b32 s82, {ro*1280}")
        A(f"buffer_load_dwordx4 v2, {srd(SX)}, s82 offen lds")
    A("s_mov_b64 exec, -1")
    A("v_lshrrev_b32 v3, 3, v0\nv_lshlrev_b32 v3, 12, v3\nv_and_b32 v4, 7, v0\nv_lshl_add_u32 v3, v4, 4, v3")
    A(f"s_mul_i32 s82, s5, {80*4096}\ns_lshl_b32 s83, s4, 7\ns_add_u32 s82, s82, s83\ns_lshl_b32 s83, s6, 15\ns_add_u32 s82, s82, s83\ns_add_u32 s82, s82, {Y_OFF}")
    A(f"s_lshl_b32 s83, s6, 10\ns_add_u32 s83, s83, {YIMG}")
    for t in range(3):
        if t == 2:
            A("s_cmp_ge_u32 s6, 2\ns_cbranch_scc1 L_g2_noy")
        A(f"s_add_u32 m0, s83, {4096*t}\ns_add_u32 s84, s82, {t*4*8*4096}")
        A(f"buffer_load_dwordx4 v3, {srd(SWS)}, s84 offen lds{ld}")
    A("L_g2_noy:")
    A("v_and_b32 v4, 15, v0\nv_lshrrev_b32 v5, 2, v4\nv_lshlrev_b32 v5, 1, v5\nv_and_b32 v6, 1, v4\nv_or_b32 v5, v5, v6")
    A("v_and_b32 v6, 2, v4\nv_lshl_add_u32 v4, v6, 4, v5")
    A("v_lshlrev_b32 v5, 3, v4")
    A(f"s_lshl_b32 s84, s4, 9\ns_lshl_b32 s85, s6, 6\ns_add_u32 s84, s84, s85\ns_add_u32 s84, s84, {G_OFF}")
    A(f"buffer_load_dwordx2 v[6:7], v5, {srd(SWS)}, s84 offen{ld}")
    A("v_mul_u32_u24 v4, 160, v4\nv_lshrrev_b32 v5, 4, v0\nv_lshl_add_u32 v4, v5, 3, v4\nv_add_u32 v4, s81, v4")
    for i in range(80):
        A(f"v_mov_b32 v{G2_ACC+i}, 0")
    loads = []
    for ks in range(12):
        loads += [("w", 5 * ks + i) for i in range(5)] + [("h", 4 * ks + i) for i in range(4)]
    emit = lambda x: wload(x[1]) if x[0] == "w" else hload(x[1])
    PRE = 54
    stamp(A, 1)
    for x in loads[:PRE]: A(emit(x))
    li = PRE
    for ks in range(12):
        A(f"s_waitcnt vmcnt({li - 9 * (ks + 1)})")
        if ks in (0, 6): stamp(A, {0: 2, 6: 3}[ks])
        mf = []
        for st_ in range(4):
            for dt in range(5):
                d = G2_ACC + (dt * 4 + st_) * 4
                mf.append(f"v_mfma_f32_16x16x32_bf16 {v(d,4)}, {a(4*(5*ks+dt),4)}, {v(G2_HF+4*((4*ks+st_) % G2_NH),4)}, {v(d,4)}")
        nxt = [emit(x) for x in loads[li:li + 9]]
        li = min(len(loads), li + 9)
        out = []
        for i, m in enumerate(mf):
            out.append(m)
            if i % 2 == 1 and nxt: out.append(nxt.pop(0))
        for x in out + nxt: A(x)
    stamp(A, 4)
    A(f"s_mul_i32 s84, s6, 20480\ns_add_u32 s84, s84, {RED}\nv_add_u32 v8, s84, v1")
    for dt in range(5):
        for st_ in range(4):
            d = G2_ACC + (dt * 4 + st_) * 4
            A(f"ds_write_b128 v8, {v(d,4)} offset:{(dt*4+st_)*1024}")
    A("s_waitcnt vmcnt(0) lgkmcnt(0)\ns_barrier")
    stamp(A, 5)
    A(f"s_lshl_b32 s84, s6, 10\ns_add_u32 s84, s84, {RED}\nv_add_u32 v8, s84, v1\nv_add_u32 v9, 40960, v8")
    for sw in range(4):
        for dt in range(5):
            A(f"ds_read_b128 {v(96 + (sw*5+dt)*4, 4)}, v{8 + (sw >> 1)} offset:{(sw & 1)*20480 + dt*4096}")
    A("v_lshrrev_b32 v10, 2, v0\nv_lshlrev_b32 v10, 7, v10\nv_and_b32 v11, 3, v0\nv_lshl_add_u32 v10, v11, 3, v10")
    A(f"s_lshl_b32 s84, s6, 5\ns_add_u32 s84, s84, {YIMG}\nv_add_u32 v10, s84, v10")
    for dt in range(5):
        A(f"ds_read_b64_tr_b16 {v(176+2*dt,2)}, v10 offset:{dt*2048}")
    for dt in range(5):
        A(f"ds_read_b64 {v(186+2*dt,2)}, v4 offset:{dt*32}")
    A("v_mov_b32 v12, v6\nv_mov_b32 v13, v6\nv_mov_b32 v14, v7\nv_mov_b32 v15, v7")
    A("s_waitcnt lgkmcnt(0)")
    for dt in range(5):
        for hf in range(2):
            b = 96 + dt * 4 + 2 * hf
            A(f"v_pk_add_f32 {v(b,2)}, {v(b,2)}, {v(b+20,2)}")
            A(f"v_pk_add_f32 {v(b+40,2)}, {v(b+40,2)}, {v(b+60,2)}")
            unpack(A, 200, 176 + 2 * dt + hf); unpack(A, 202, 186 + 2 * dt + hf)
            A(f"v_pk_add_f32 {v(b,2)}, {v(b,2)}, {v(b+40,2)}")
            A("v_pk_mul_f32 v[200:201], v[200:201], v[202:203]")
            A(f"v_pk_mul_f32 {v(b,2)}, {v(b,2)}, v[14:15]")
            A(f"v_pk_fma_f32 {v(b,2)}, v[200:201], v[12:13], {v(b,2)}")
            A(f"v_cvt_pk_bf16_f32 v{204+2*dt+hf}, v{b}, v{b+1}")
        A(f"ds_write_b64 v4, {v(204+2*dt,2)} offset:{dt*32}")
    A("s_waitcnt lgkmcnt(0)")
    stamp(A, 6)
    A("v_add_u32 v8, s81, v1")
    for i, ro in enumerate((0, 4, 32, 36)):
        A(f"ds_read_b128 {v(216+4*i,4)}, v8 offset:{ro*160}")
    A("s_mov_b32 exec_lo, -1\ns_mov_b32 exec_hi, 0xff")
    for i, ro in enumerate((0, 4, 32, 36)):
        A(f"s_waitcnt lgkmcnt({3-i})\ns_mov_b32 s82, {ro*1280}")
        A(f"buffer_store_dwordx4 {v(216+4*i,4)}, v2, {srd(SOUT)}, s82 offen")


def kernel_text(name, body):
    return (f".globl {name}\n.p2align 8\n.type {name},@function\n{name}:\n" + body)


def desc(name, vgpr, acc):
    return f""".p2align 6
.amdhsa_kernel {name}
  .amdhsa_next_free_vgpr {vgpr}
  .amdhsa_next_free_sgpr 102
  .amdhsa_accum_offset {acc}
  .amdhsa_group_segment_fixed_size 0
  .amdhsa_kernarg_size 104
  .amdhsa_user_sgpr_count 2
  .amdhsa_user_sgpr_kernarg_segment_ptr 1
  .amdhsa_system_sgpr_workgroup_id_x 1
.end_amdhsa_kernel
"""


def header(launch_lines):
    ref = open(f"cdna_kernels/{NAME}.s.ref").read().split("\n")
    out = []
    for ln in ref:
        if not ln.startswith(";"): break
        if ln.startswith("; @launch"):
            out += launch_lines
        else:
            out.append(ln)
    return "\n".join(out) + "\n"


def build(NB=3):
    ks = []
    A = Asm(); prologue(A, "L_p1_end"); p1(A, 0); stamp_end(A, 0); A("L_p1_end:\ns_endpgm"); ks.append(("p1_kernel", A.text(), 256, 32768))
    A = Asm(); prologue(A, "L_g1_end"); gemm1(A, NB); stamp_end(A, 1); A("L_g1_end:\ns_endpgm"); ks.append(("g1_kernel", A.text(), 256, NB * 32768))
    A = Asm(); prologue(A, "L_cv_end"); conv(A, 0, "L_cv_end"); stamp_end(A, 2); A("L_cv_end:\ns_endpgm"); ks.append(("cv_kernel", A.text(), 256, 3 * CH_BYTES))
    A = Asm(); prologue(A, "L_g2_end"); gemm2(A, 0); stamp_end(A, 3); A("L_g2_end:\ns_endpgm"); ks.append((NAME + "_kernel", A.text(), 512, 102400))
    txt = header([f"; @launch kernel={k[0]} grid=(256,1,1) block=(256,1,1) lds={k[3]}" for k in ks])
    txt += '.amdgcn_target "amdgcn-amd-amdhsa--gfx950"\n.text\n'
    for k in ks: txt += kernel_text(k[0], k[1])
    txt += '.section .rodata,"a"\n'
    for k in ks: txt += desc(k[0], k[2], 256)
    return txt


if __name__ == "__main__":
    out = sys.argv[1] if len(sys.argv) > 1 else f"cdna_kernels/{NAME}.s"
    NB = int(sys.argv[2]) if len(sys.argv) > 2 else 3
    STAMPS = len(sys.argv) > 3
    open(out, "w").write(build(NB))
```

```python
import sys, os
sys.path.insert(0, os.path.dirname(__file__))
from asmlib import Asm, resolve_waits
from gen1 import header, desc, kernel_text, NAME

U_OFF = 0
W2F_OFF = 5242880
HF_OFF = 7208960
Y_OFF = 13500416
FLAG_OFF = 16138240
EC_OFF, ER_OFF = FLAG_OFF, FLAG_OFF + 1024
FA_OFF, FB_OFF, FC_OFF = FLAG_OFF + 8192, FLAG_OFF + 12288, FLAG_OFF + 16384
WS_SIZE = FLAG_OFF + 24576
STAMP_OFF = WS_SIZE
TAGC = 0x9E3779B9

SX, SK_, SV, SSK, SH, SW1, SW2, SGW, SOUT, SWS = 8, 12, 16, 20, 24, 28, 32, 36, 40, 44
CVL = 98304
CH_BYTES = 17536
GWL = CVL + 3 * CH_BYTES
LDS_TOTAL = GWL + 2560
RED, YIMG, QIMG = 0, 61440, 71680

P = dict(
    rot1=1, rot2=0, rotk=0, pst=0,
    w9=10,
    cw=[4, 6, 8, 8, 8, 8, 8, 0],
    chf=[0, 0, 0, 0, 0, 0, 4, 12],
    flagB=3, pollB=5, chkB=6,
    flagC=(1, 2), pollC=(2, 4), chkC=(3, 0), bar=12,
    idle_depth=12, idle_pre=16, lsc=' sc1',
)
STAMPS = False
INSUF = False


def srd(b): return f"s[{b}:{b+3}]"
def v(b, n=1): return f"v{b}" if n == 1 else f"v[{b}:{b+n-1}]"
def a(b, n=1): return f"a{b}" if n == 1 else f"a[{b}:{b+n-1}]"


class Out:
    def __init__(self):
        self.l = []

    def __call__(self, s):
        if isinstance(s, (list, tuple)):
            for x in s: self(x)
            return
        for line in s.split("\n"):
            line = line.strip()
            if line: self.l.append(line)


def stamp(i, force=False):
    if not STAMPS: return ""
    if P["pst"] and INSUF: return ""
    return f"s_memtime s[92:93]\ns_waitcnt lgkmcnt(0)\nv_writelane_b32 v9, s92, {i}"


def unpack(d, s):
    return f"v_lshlrev_b32 v{d}, 16, v{s}\nv_and_b32 v{d+1}, 0xffff0000, v{s}"


def spread(main, groups, lo=0, hi=None):
    hi = len(main) if hi is None else hi
    n = len(groups)
    pos = {}
    for k in range(n):
        pos.setdefault(lo + (k * (hi - lo)) // n, []).append(groups[k])
    out = []
    for i, m in enumerate(main):
        out.append(m)
        out.extend(pos.get(i, []))
    return out


SPINS = []


def poll_check(name, tagreg, vaddr):
    SPINS.append(f"""L_spin_{name}:
s_mov_b32 s90, 0x40000
L_spinl_{name}:
buffer_load_dword v5, {vaddr}, {srd(SWS)}, 0 offen sc1
s_waitcnt vmcnt(0)
v_cmp_ne_u32 vcc, {tagreg}, v5
s_cbranch_vccz L_ret_{name}
s_sub_u32 s90, s90, 1
s_cmp_lg_u32 s90, 0
s_cbranch_scc1 L_spinl_{name}
s_branch L_ret_{name}""")
    return f"v_cmp_ne_u32 vcc, {tagreg}, v5\ns_cbranch_vccnz L_spin_{name}\nL_ret_{name}:"


def poll_load(tag, vaddr):
    return f"buffer_load_dword v5, {vaddr}, {srd(SWS)}, 0 offen sc1 ;@{tag}"


def flag_store(vtag, soff):
    return f"s_mov_b64 exec, 1\nbuffer_store_dword {vtag}, off, {srd(SWS)}, {soff} sc1\ns_mov_b64 exec, -1"


G1_ACC = 16
G1_WF = (64, 88)
G1_XF = (112, 120)
G1_GW = (128, 132)
G1_WV = 224
G1_XV = 230
G1_RA = 232
G1_GA = 252
ZACC = 12
CV_ACC = 96
CV_U = (128, 160)
CV_H = (192, 224)
G2_ACC = (216, 236)


def hf_reg(slot):
    return 16 + 4 * slot


def g1_dma(stage):
    buf = stage % 3
    out = []
    for j in range(2):
        out.append(f"s_add_u32 m0, s67, {buf*32768 + j*1024}\ns_nop 0\n"
                   f"buffer_load_dwordx4 v{G1_XV+j}, {srd(SX)}, s64 offen lds ;@S{stage}")
    for j in range(6):
        out.append(f"s_add_u32 m0, s66, {buf*32768 + j*1024}\ns_nop 0\n"
                   f"buffer_load_dwordx4 v{G1_WV+j}, {srd(SW1)}, s65 offen lds ;@S{stage}")
    out[-1] += ("\ns_add_u32 s64, s64, 128\ns_add_u32 s65, s65, 196608\ns_cmp_eq_u32 s64, 1280\n"
                "s_cselect_b32 s64, 0, s64\ns_cselect_b32 s65, 0, s65")
    return out


def g1_reads(stage, kk):
    buf = stage % 3
    ra = G1_RA + 10 * (buf >> 1)
    bo = (buf & 1) * 32768
    out = []
    for sl in range(2):
        out.append(f"ds_read_b128 {v(G1_XF[kk] + 4*sl, 4)}, v{ra+6+2*kk+sl} offset:{bo}")
    for t in range(6):
        for h in range(2):
            out.append(f"ds_read_b64_tr_b16 {v(G1_WF[kk] + 4*t + 2*h, 2)}, v{ra+t} offset:{bo + kk*12288 + h*1536}")
    out.append(f"ds_read_b128 {v(G1_GW[kk], 4)}, v{G1_GA} offset:{stage*128 + kk*64}")
    return out


def g1_mfmas(kk, first=False):
    out = []
    for t in range(6):
        for sl in range(2):
            d = G1_ACC + (sl * 6 + t) * 4
            c = "0" if first else v(d, 4)
            out.append(f"v_mfma_f32_16x16x32_bf16 {v(d,4)}, {v(G1_WF[kk]+4*t,4)}, {v(G1_XF[kk]+4*sl,4)}, {c}")
    c = "0" if first else v(ZACC, 4)
    out.append(f"v_mfma_f32_16x16x32_bf16 {v(ZACC,4)}, {v(G1_GW[kk],4)}, {v(G1_XF[kk],4)}, {c}")
    return out


def mix(mf, reads, extras):
    out = []
    ri = 0
    n = len(extras)
    pos = {}
    for k in range(n):
        pos.setdefault((k * len(mf)) // n, []).append(extras[k])
    for i, m in enumerate(mf):
        out.extend(pos.get(i, []))
        out.append(m)
        for _ in range(2):
            if ri < len(reads):
                out.append(reads[ri]); ri += 1
    out.extend(reads[ri:])
    return out


def g1_stage(A, t, ea, eb, pre=None, waits=""):
    A(f"@wait S{t} {waits}\ns_barrier")
    if pre: A(pre)
    if t == 0:
        A(g1_reads(0, 0)); A(ea)
    else:
        A(mix(g1_mfmas(1), g1_reads(t, 0), ea))
    A("s_waitcnt lgkmcnt(0)")
    A(mix(g1_mfmas(0, first=(t == 0)), g1_reads(t, 1), eb))
    A("s_waitcnt lgkmcnt(0)")


def wload(n):
    i, dt = divmod(n, 5)
    if dt < 4:
        return f"buffer_load_dwordx4 {a(4*n,4)}, v1, {srd(SWS)}, s71 offen offset:{dt*1024}{P['lsc']} ;@W{n}"
    return (f"s_add_u32 s74, s71, 4096\ns_add_u32 s71, s71, 5120\n"
            f"buffer_load_dwordx4 {a(4*n,4)}, v1, {srd(SWS)}, s74 offen{P['lsc']} ;@W{n}\n"
            "s_cmp_eq_u32 s71, s73\ns_cselect_b32 s71, s72, s71")


def hload(slot):
    g, i = divmod(slot, 12)
    return (f"s_add_u32 s75, s{48+i}, s{76+g}\n"
            f"buffer_load_dwordx4 {v(hf_reg(slot),4)}, v1, {srd(SWS)}, s75 offen{P['lsc']} ;@H{slot}")


def prefix(A):
    KIMG, VIMG, W2IMG = CVL, CVL + 11136, CVL + 22272
    A("s_cmp_ge_u32 s2, 256\ns_cbranch_scc1 L_end")
    for b, o in ((SK_, 8), (SV, 16), (SWS, 96), (SW2, 64), (SSK, 24), (SGW, 72), (SX, 0), (SW1, 56), (SH, 32), (88, 40),
                 (SOUT, 80)):
        A(f"s_load_dwordx2 s[{b}:{b+1}], s[0:1], {o}")
    if STAMPS:
        A("s_memrealtime s[94:95]\ns_memtime s[92:93]\nv_mov_b32 v9, 0")
    A("v_lshrrev_b32 v1, 6, v0\nv_and_b32 v0, 63, v0\nv_readfirstlane_b32 s6, v1\nv_lshlrev_b32 v1, 4, v0")
    A("s_lshr_b32 s3, s2, 3\ns_and_b32 s7, s2, 7")
    A("s_lshr_b32 s4, s7, 1\ns_lshl_b32 s4, s4, 3\ns_lshr_b32 s5, s3, 2\ns_add_u32 s4, s4, s5")
    A("s_and_b32 s5, s7, 1\ns_lshl_b32 s5, s5, 2\ns_and_b32 s3, s3, 3\ns_add_u32 s5, s5, s3")
    for b, n in ((SX, 2621440), (SK_, 2621440), (SSK, 5120), (SH, 2621440), (SW1, 1966080),
                 (SW2, 1966080), (SGW, 1280), (SOUT, 2621440), (SWS, WS_SIZE + (131072 if STAMPS else 0))):
        A(f"s_mov_b32 s{b+2}, {n}\ns_mov_b32 s{b+3}, 0x00020000")
    A("v_mul_u32_u24 v16, 205, v0\nv_lshrrev_b32 v16, 11, v16\nv_mul_u32_u24 v17, 10, v16\nv_sub_u32 v17, v0, v17")
    A("v_mul_u32_u24 v18, 1280, v16\nv_lshl_add_u32 v18, v17, 4, v18")
    A("s_mul_i32 s7, s4, 81920\ns_mul_i32 s3, s5, 160\ns_add_u32 s7, s7, s3")
    A("s_and_b32 s74, s6, 1\ns_mul_i32 s75, s74, 40960\ns_add_u32 s75, s75, s7")
    A("v_add_u32 v19, s75, v18\nv_subrev_u32 v20, 5120, v19")
    A(f"s_lshr_b32 s80, s6, 1\ns_mul_i32 s80, s80, 11136\ns_mul_i32 s75, s74, 5248\ns_add_u32 s80, s80, s75\ns_add_u32 s80, s80, {KIMG}")
    A(f"s_mul_i32 s81, s74, 640\ns_mul_i32 s82, s6, 640\ns_add_u32 s82, s82, {GWL}")
    for t in range(3):
        A(f"s_lshl_b32 s83, s6, 6\ns_add_u32 s83, s83, {256 * t}")
        A(f"v_add_u32 v26, s83, v0\nv_mul_u32_u24 v27, 6554, v26\nv_lshrrev_b32 v27, 16, v27")
        A(f"v_mul_u32_u24 v28, 10, v27\nv_sub_u32 v28, v26, v28\nv_mul_u32_u24 v27, 1280, v27\nv_lshl_add_u32 v{21+t}, v28, 4, v27")
    A(f"s_sub_u32 s83, s7, 655360\ns_lshl_b32 s84, s6, 10\ns_add_u32 s84, s84, {W2IMG}")
    A("v_lshrrev_b32 v24, 3, v0\nv_lshlrev_b32 v24, 5, v24")
    A("s_mul_i32 s85, s5, 640\ns_mul_i32 s86, s6, 160\ns_add_u32 s85, s85, s86")
    A(f"s_lshl_b32 s86, s5, 7\ns_add_u32 s86, s86, {EC_OFF}\ns_lshl_b32 s87, s4, 7\ns_add_u32 s87, s87, {ER_OFF}")
    A("s_mul_i32 s74, s6, 49152\ns_mul_i32 s75, s5, 384\ns_add_u32 s74, s74, s75\ns_add_u32 s75, s74, 24576")
    for j in range(3):
        A(f"v_add_u32 v26, {64*j}, v0\nv_mul_u32_u24 v27, 2731, v26\nv_lshrrev_b32 v27, 16, v27")
        A("v_mul_u32_u24 v28, 24, v27\nv_sub_u32 v28, v26, v28")
        A("v_and_b32 v29, 2, v27\nv_xor_b32 v28, v28, v29\nv_mul_u32_u24 v27, 3072, v27")
        A(f"v_lshl_add_u32 v29, v28, 4, v27\nv_add_u32 v{G1_WV+j}, s74, v29")
        A(f"v_xor_b32 v28, 4, v28\nv_lshl_add_u32 v29, v28, 4, v27\nv_add_u32 v{G1_WV+3+j}, s75, v29")
    A("v_lshrrev_b32 v26, 3, v0\nv_and_b32 v27, 7, v0\nv_xor_b32 v27, v27, v26")
    A("v_lshrrev_b32 v28, 2, v26\nv_lshlrev_b32 v28, 1, v28\nv_and_b32 v29, 1, v26\nv_or_b32 v28, v28, v29")
    A("v_and_b32 v29, 2, v26\nv_lshl_add_u32 v28, v29, 4, v28")
    A("v_mul_u32_u24 v28, 1280, v28\nv_lshl_add_u32 v28, v27, 4, v28")
    A("s_mul_i32 s74, s4, 81920\ns_mul_i32 s75, s6, 10240\ns_add_u32 s74, s74, s75")
    A(f"v_add_u32 v{G1_XV}, s74, v28\nv_add_u32 v{G1_XV+1}, 5120, v{G1_XV}")
    A("s_mul_i32 s66, s6, 6144\ns_lshl_b32 s67, s6, 11\ns_add_u32 s67, s67, 24576")
    if P["rot1"]:
        A("s_and_b32 s74, s4, 7\ns_and_b32 s75, s5, 3\ns_mul_i32 s75, s75, 3\ns_add_u32 s74, s74, s75")
        A("s_sub_u32 s75, s74, 10\ns_cmp_ge_u32 s74, 10\ns_cselect_b32 s74, s75, s74")
        A("s_lshl_b32 s64, s74, 7\ns_mul_i32 s65, s74, 196608")
    else:
        A("s_mov_b32 s64, 0\ns_mov_b32 s65, 0")
    A(f"v_lshrrev_b32 v26, 4, v0\ns_add_u32 s74, s64, {GWL}\nv_lshlrev_b32 v26, 4, v26\nv_add_u32 v{G1_GA}, s74, v26")
    A("s_lshl_b32 s91, s6, 5\ns_add_u32 s91, s91, s4\ns_cmp_lt_u32 s91, 80\ns_cselect_b64 s[62:63], -1, 0\ns_cselect_b32 s91, s91, 0")
    A("s_mul_i32 s70, s5, 80\ns_add_u32 s70, s70, s91\ns_lshl_b32 s96, s70, 1\ns_and_b32 s96, s96, -4\ns_lshl_b32 s70, s70, 12")
    A("s_cmp_lt_u32 s6, 2")
    A("s_waitcnt lgkmcnt(0)")
    if STAMPS:
        A("v_writelane_b32 v9, s92, 0\nv_writelane_b32 v9, s94, 30")
    A(stamp(22))
    A(f"s_cselect_b32 s{SK_}, s{SK_}, s{SV}\ns_cselect_b32 s{SK_+1}, s{SK_+1}, s{SV+1}")
    A("s_mov_b32 exec_lo, -1\ns_mov_b32 exec_hi, 0xff")
    for i in range(9):
        A(f"s_add_u32 m0, s80, {(i >> 1) * 1312 + (i & 1) * 640}")
        if i == 0:
            A(f"s_nop 0\nbuffer_load_dwordx4 v20, {srd(SK_)}, 0 offen lds ;@P1")
        else:
            A(f"s_mov_b32 s74, {(i - 1) * 5120}\nbuffer_load_dwordx4 v19, {srd(SK_)}, s74 offen lds ;@P1")
    A(f"s_mov_b32 m0, s82\ns_nop 0\nbuffer_load_dwordx4 v1, {srd(SGW)}, s81 offen lds ;@P1")
    A("s_mov_b64 exec, -1")
    A(f"buffer_load_dword v6, off, {srd(SWS)}, s86 sc1 ;@P1\nbuffer_load_dword v7, off, {srd(SWS)}, s87 sc1 ;@P1")
    A("s_cmp_lt_u32 s4, 8\ns_cbranch_scc1 L_now2a")
    for t in range(3):
        if t == 2:
            A("s_cmp_ge_u32 s6, 2\ns_cbranch_scc1 L_now2a")
        A(f"s_add_u32 m0, s84, {4096*t}\ns_nop 0")
        A(f"buffer_load_dwordx4 v{21+t}, {srd(SW2)}, s83 offen lds ;@opt")
    A("L_now2a:")
    A(f"buffer_load_dwordx4 v[136:139], v24, {srd(SSK)}, s85 offen ;@P1")
    A(f"buffer_load_dwordx4 v[140:143], v24, {srd(SSK)}, s85 offen offset:16 ;@P1")
    A(stamp(23))
    A(g1_dma(0))
    A(stamp(24))
    A(f"s_add_u32 s94, s{SH}, s70\ns_addc_u32 s95, s{SH+1}, 0\ns_load_dwordx2 s[94:95], s[94:95], 0\ns_load_dword s96, s[88:89], s96")
    A(stamp(1))
    A("v_lshrrev_b32 v26, 4, v0\nv_lshrrev_b32 v27, 2, v0\nv_and_b32 v27, 3, v27")
    A("v_lshl_add_u32 v28, v26, 3, v27\nv_mul_u32_u24 v28, 384, v28\nv_and_b32 v29, 3, v0\nv_lshl_add_u32 v28, v29, 3, v28")
    A("v_lshrrev_b32 v29, 1, v27\nv_and_b32 v30, 1, v26\nv_lshl_add_u32 v29, v30, 1, v29")
    A("s_and_b32 s74, s6, 1\ns_mul_i32 s74, s74, 6")
    for t in range(6):
        A(f"s_add_u32 s75, s74, {t}\nv_xor_b32 v30, s75, v29\nv_lshl_add_u32 v{G1_RA+t}, v30, 5, v28")
    A("v_and_b32 v27, 15, v0\nv_and_b32 v28, 7, v0\nv_xor_b32 v28, v28, v26\nv_lshlrev_b32 v27, 7, v27")
    A("s_lshl_b32 s74, s6, 11\ns_add_u32 s74, s74, 24576")
    A(f"v_add_u32 v27, s74, v27\nv_lshl_add_u32 v{G1_RA+6}, v28, 4, v27\nv_xor_b32 v{G1_RA+7}, 2048, v{G1_RA+6}")
    A(f"v_xor_b32 v{G1_RA+8}, 64, v{G1_RA+6}\nv_xor_b32 v{G1_RA+9}, 64, v{G1_RA+7}")
    for i in range(10):
        A(f"v_add_u32 v{G1_RA+10+i}, 65536, v{G1_RA+i}")
    if P["rotk"]:
        A("s_add_u32 s68, s6, s5\ns_and_b32 s68, s68, 3")
    else:
        A("s_mov_b32 s68, s6")
    if P["rot2"]:
        A("s_and_b32 s74, s4, 7\ns_mul_i32 s74, s74, 3\ns_lshr_b32 s74, s74, 1")
    else:
        A("s_mov_b32 s74, 0")
    A(f"s_mul_i32 s72, s5, 240\ns_mul_i32 s75, s68, 60\ns_add_u32 s72, s72, s75\ns_lshl_b32 s72, s72, 10\ns_add_u32 s72, s72, {W2F_OFF}")
    A("s_add_u32 s73, s72, 61440\ns_mul_i32 s75, s74, 5120\ns_add_u32 s71, s72, s75")
    A(f"s_mul_i32 s75, s4, 48\ns_mul_i32 s76, s68, 12\ns_add_u32 s75, s75, s76\ns_lshl_b32 s75, s75, 12\ns_add_u32 s75, s75, {HF_OFF}")
    A("s_add_u32 s76, s75, 49152\ns_lshl_b32 s74, s74, 12\ns_add_u32 s48, s75, s74")
    for i in range(1, 12):
        A(f"s_add_u32 s{48+i}, s{47+i}, 4096\ns_cmp_eq_u32 s{48+i}, s76\ns_cselect_b32 s{48+i}, s75, s{48+i}")
    A("s_mul_i32 s74, s91, 205\ns_lshr_b32 s74, s74, 12\ns_lshl_b32 s74, s74, 7")
    A("v_lshlrev_b32 v2, 2, v0\nv_add_u32 v2, s74, v2")
    A("v_lshrrev_b32 v26, 3, v0\nv_and_b32 v26, 3, v26\nv_and_b32 v27, 7, v0\nv_min_u32 v28, 5, v27")
    A("s_mul_i32 s74, s68, 24\ns_add_u32 s74, s74, 32\nv_lshlrev_b32 v28, 2, v28\nv_lshl_add_u32 v28, v26, 7, v28\nv_add_u32 v28, s74, v28")
    A(f"v_cmp_gt_u32 vcc, 32, v0\ns_lshl_b32 s74, s5, 9\ns_add_u32 s74, s74, {FA_OFF}\nv_cndmask_b32 v2, v28, v2, vcc\nv_add_u32 v2, s74, v2")
    A(f"s_lshl_b32 s74, s4, 7\ns_lshl_b32 s75, s68, 5\ns_add_u32 s74, s74, s75\ns_add_u32 s74, s74, {FB_OFF}")
    A("v_lshlrev_b32 v27, 2, v27\nv_add_u32 v3, s74, v27")
    A("s_cmp_lt_u32 s6, 2\ns_cselect_b32 s74, 2, 1\nv_min_u32 v26, s74, v26\nv_lshl_add_u32 v4, v26, 7, v27")
    A(f"s_lshl_b32 s74, s5, 9\ns_lshl_b32 s75, s6, 5\ns_add_u32 s74, s74, s75\ns_add_u32 s74, s74, {FC_OFF}\nv_add_u32 v4, s74, v4")
    A(f"s_mul_i32 s69, s6, {CH_BYTES}\ns_add_u32 s69, s69, {CVL}")
    A("v_and_b32 v26, 1, v0\nv_mul_u32_u24 v26, 4576, v26\nv_and_b32 v27, 14, v0\nv_lshl_add_u32 v26, v27, 5, v26")
    A("v_lshrrev_b32 v27, 4, v0\nv_lshlrev_b32 v28, 4, v27\nv_sub_u32 v26, v26, v28\ns_add_u32 s74, s69, 48\nv_add_u32 v10, s74, v26")
    A("v_and_b32 v26, 15, v0\nv_lshlrev_b32 v26, 2, v26\nv_add_u32 v26, v26, v28")
    A("v_and_b32 v27, 1, v0\nv_mul_u32_u24 v27, 4228, v27\nv_sub_u32 v26, v26, v27")
    A(f"s_add_u32 s74, s69, {9152 + 4224}\nv_add_u32 v11, s74, v26")
    A("s_mul_i32 s74, s4, 48\ns_mul_i32 s75, s5, 6\ns_add_u32 s74, s74, s75\ns_and_b32 s75, s6, 1\ns_mul_i32 s75, s75, 3\ns_add_u32 s74, s74, s75")
    A(f"s_lshl_b32 s74, s74, 2\ns_add_u32 s74, s74, s6\ns_lshl_b32 s97, s74, 10\ns_add_u32 s97, s97, {HF_OFF}\ns_xor_b32 s98, s97, 1024")
    assert HF_OFF % 4096 == 0
    A("v_and_b32 v58, 7, v0\nv_mul_u32_u24 v58, 1312, v58\nv_lshrrev_b32 v26, 3, v0\nv_lshl_add_u32 v58, v26, 3, v58")
    A(f"s_mul_i32 s74, s6, 40\ns_add_u32 s74, s74, {KIMG}\nv_add_u32 v58, s74, v58")
    A("v_lshrrev_b32 v59, 2, v0\nv_mul_u32_u24 v59, 160, v59\nv_and_b32 v27, 3, v0\nv_lshl_add_u32 v59, v27, 3, v59")
    for t in range(3):
        A(f"s_add_u32 s74, s6, {4*t}\ns_lshl_b32 s75, s74, 5\ns_cmp_ge_u32 s74, 5\ns_cselect_b32 s74, 4960, 0\ns_add_u32 s75, s75, s74")
        A(f"s_add_u32 s75, s75, {W2IMG}\nv_add_u32 v{193+t}, s75, v59")
    A("v_lshlrev_b32 v192, 15, v26\nv_and_b32 v27, 7, v0\nv_lshl_add_u32 v192, v27, 4, v192")
    A(f"s_mul_i32 s83, s5, {80*8192}\ns_mul_i32 s74, s6, {20*8192}\ns_add_u32 s83, s83, s74\ns_lshl_b32 s74, s4, 7\ns_add_u32 s83, s83, s74")
    A(f"s_mul_i32 s84, s5, 240\ns_mul_i32 s74, s4, 10\ns_add_u32 s84, s84, s74\ns_add_u32 s84, s84, s6\ns_lshl_b32 s84, s84, 10\ns_add_u32 s84, s84, {W2F_OFF - 80*1024}")
    A(f"s_lshl_b32 s85, s5, 9\ns_lshl_b32 s74, s6, 7\ns_add_u32 s85, s85, s74\ns_lshl_b32 s74, s4, 2\ns_add_u32 s85, s85, s74\ns_add_u32 s85, s85, {FA_OFF}")
    A(stamp(25))
    if STAMPS: A("s_waitcnt vmcnt(16)\n" + stamp(26) + "\ns_waitcnt vmcnt(12)\n" + stamp(27) + "\n@wait P1\n" + stamp(28))
    A("@wait P1\ns_barrier")
    A(stamp(2))
    ko = lambda i: (i >> 3) * 1312 + (i & 7) * 160
    for i in range(12):
        A(f"ds_read_b64 v[{16+2*i}:{17+2*i}], v58 offset:{ko(i)}")
    for i in range(3, 12):
        A(f"ds_read_b64 v[{40+2*(i-3)}:{41+2*(i-3)}], v58 offset:{11136 + ko(i)}")
    for t in range(3):
        A(f"ds_read_b64_tr_b16 v[{180+4*t}:{181+4*t}], v{193+t}")
        A(f"ds_read_b64_tr_b16 v[{182+4*t}:{183+4*t}], v{193+t} offset:2560")
    A(f"v_add_u32 v6, {TAGC:#x}, v6\nv_add_u32 v7, {TAGC:#x}, v7")
    for c in range(4):
        A(f"v_lshlrev_b32 v{60+c}, 16, v{136+2*c}\nv_and_b32 v{64+c}, 0xffff0000, v{136+2*c}")
        A(f"v_lshlrev_b32 v{68+c}, 16, v{137+2*c}\nv_and_b32 v{72+c}, 0xffff0000, v{137+2*c}")
    A("v_readfirstlane_b32 s60, v6\nv_readfirstlane_b32 s61, v7")
    A("s_waitcnt lgkmcnt(0)")
    A("s_cmp_lt_u32 s4, 8\ns_cbranch_scc1 L_now2c")
    for t in range(3):
        if t == 2:
            A("s_cmp_ge_u32 s6, 2\ns_cbranch_scc1 L_now2c")
        A(f"buffer_store_dwordx4 v[{180+4*t}:{183+4*t}], v1, {srd(SWS)}, s84 offen sc1 ;@opt\ns_add_u32 s84, s84, 4096")
    A("L_now2c:")
    B = Out()
    for i in range(12):
        B(unpack(76 + 4 * i, 16 + 2 * i)); B(unpack(78 + 4 * i, 17 + 2 * i))
    for ip in range(9):
        for hf in range(2):
            o = 144 + 4 * ip + 2 * hf
            for j in range(4):
                kr = 76 + 4 * (ip + 3 - j) + 2 * hf
                tr = 60 + 4 * j + 2 * hf
                if j == 0:
                    B(f"v_pk_mul_f32 v[{o}:{o+1}], v[{kr}:{kr+1}], v[{tr}:{tr+1}]")
                else:
                    B(f"v_pk_fma_f32 v[{o}:{o+1}], v[{kr}:{kr+1}], v[{tr}:{tr+1}], v[{o}:{o+1}]")
            B(unpack(58, 40 + 2 * ip + hf))
            B(f"v_pk_mul_f32 v[{o}:{o+1}], v[{o}:{o+1}], v[58:59]")
    A(spread(B.l, g1_dma(1) + g1_dma(2)))
    A(stamp(3))
    A("s_mov_b32 exec_lo, -1\ns_mov_b32 exec_hi, 0xff")
    for c in range(4):
        for rho in range(2):
            d = 16 + 4 * (2 * c + rho)
            for q in range(4):
                A(f"v_cvt_pk_bf16_f32 v{d+q}, v{144 + 4*(7+rho-2*q) + c}, v{144 + 4*(6+rho-2*q) + c}")
            A(f"buffer_store_dwordx4 v[{d}:{d+3}], v192, {srd(SWS)}, s83 offen sc1 ;@Ust\ns_add_u32 s83, s83, 4096")
    A("s_mov_b64 exec, -1")
    A(stamp(4))
    pads = [
        "v_mov_b32 v144, 0\nv_mov_b32 v145, 0\nv_mov_b32 v146, 0\nv_mov_b32 v147, 0",
        "v_lshrrev_b32 v148, 5, v0\nv_mul_u32_u24 v148, 4576, v148\nv_and_b32 v149, 31, v0",
        "v_lshl_add_u32 v148, v149, 4, v148\nv_add_u32 v148, s69, v148\ns_and_b32 exec_lo, s62, 0x0fffffff\ns_and_b32 exec_hi, s62, 0x0fffffff\n"
        "ds_write_b128 v148, v[144:147]\ns_mov_b64 exec, -1",
        "s_bitcmp1_b32 s70, 12\ns_cselect_b32 s80, 0, 16\ns_lshl_b32 s96, s96, s80\ns_and_b32 s96, s96, 0xffff0000",
        "s_lshl_b32 s80, s94, 16\nv_mov_b32 v148, s80\nv_add_f32 v148, s96, v148\ns_and_b32 s80, s94, 0xffff0000\nv_mov_b32 v149, s80",
        "v_cvt_pk_bf16_f32 v148, v148, v149\nv_mov_b32 v150, 0\nv_readfirstlane_b32 s80, v148",
        "v_lshrrev_b32 v148, 4, v0\nv_mul_u32_u24 v148, 4224, v148\nv_and_b32 v149, 15, v0\nv_lshl_add_u32 v148, v149, 2, v148",
        "v_writelane_b32 v150, s80, 14\nv_writelane_b32 v150, s95, 15\nv_writelane_b32 v150, s80, 31",
        "s_add_u32 s80, s69, 9152\nv_add_u32 v148, s80, v148\ns_mov_b32 exec_lo, s62\ns_mov_b32 exec_hi, 0\n"
        "ds_write_b32 v148, v150\ns_mov_b64 exec, -1",
    ]
    for t in range(8):
        d = g1_dma(t + 2) if t >= 1 else []
        ea, eb = d[:4], d[4:]
        pre = None
        if t == 0: eb = pads
        if t == 3: pre = flag_store("v6", "s85")
        if t == 6: eb = eb + [poll_load("PA", "v2")]
        g1_stage(A, t, ea, eb, pre, waits=("Ust" if t == 3 else ""))
        if t in (0, 1, 3, 7): A(stamp({0: 5, 1: 6, 3: 7, 7: 8}[t]))
    A("s_cmp_eq_u32 s62, 0\ns_cbranch_scc1 L_idle")


def silu_blocks():
    out = []
    for tp in range(3):
        for sl in range(2):
            d = G1_ACC + (sl * 6 + 2 * tp) * 4
            T = 64 + ((tp * 2 + sl) & 1) * 16
            B = Out()
            for q in range(4):
                B(f"v_pk_mul_f32 {v(T+2*q,2)}, {v(d+2*q,2)}, s[80:81]")
            for q in range(8):
                B(f"v_exp_f32 v{T+q}, v{T+q}")
            for q in range(4):
                B(f"v_pk_add_f32 {v(T+2*q,2)}, {v(T+2*q,2)}, s[82:83]")
            for q in range(8):
                B(f"v_rcp_f32 v{T+q}, v{T+q}")
            for q in range(4):
                B(f"v_pk_mul_f32 {v(T+2*q,2)}, {v(T+2*q,2)}, {v(d+2*q,2)}")
            for q in range(4):
                B(f"v_cvt_pk_bf16_f32 v{T+8+q}, v{T+2*q}, v{T+2*q+1}")
            B(f"s_add_u32 s75, s{97+sl}, {tp*4096}")
            B(f"buffer_store_dwordx4 {v(T+8,4)}, v1, {srd(SWS)}, s75 offen sc1 ;@Hst")
            out.append(B.l)
    return out


GATE = """v_cvt_pk_bf16_f32 v12, v12, v12
v_lshlrev_b32 v12, 16, v12
v_mul_f32 v12, 0xbfb8aa3b, v12
v_exp_f32 v12, v12
v_add_f32 v12, 1.0, v12
v_rcp_f32 v12, v12
v_cvt_pk_bf16_f32 v12, v12, v12
v_lshlrev_b32 v12, 16, v12
v_sub_f32 v14, 1.0, v12
v_cvt_pk_bf16_f32 v14, v14, v14
v_lshlrev_b32 v14, 16, v14
v_mov_b32 v13, v12
v_mov_b32 v15, v14"""


def cv_reads(r):
    s = r & 1
    out = []
    for p in range(8):
        out.append(f"ds_read_b128 {v(CV_U[s]+4*p,4)}, v10 offset:{512*p + 64*r}")
        for h in range(2):
            out.append(f"ds_read_b64 {v(CV_H[s]+4*p+2*h,2)}, v11 offset:{64*(7-r) + 512*p + 8*h}")
    return out


def cv_mfmas(r):
    s = r & 1
    out = []
    for Ap in range(8):
        for p in range(Ap + 1):
            d = CV_ACC + 4 * Ap
            c = "0" if (r == 0 and p == 0) else v(d, 4)
            out.append(f"v_mfma_f32_16x16x32_bf16 {v(d,4)}, {v(CV_U[s]+4*p,4)}, {v(CV_H[s]+4*(Ap-p),4)}, {c}")
    return out


def weave(mf, reads, extras):
    out = []
    n = len(extras)
    pos = {}
    for k in range(n):
        pos.setdefault(((2 * k + 1) * len(mf)) // (2 * n), []).append(extras[k])
    for i, m in enumerate(mf):
        out.append(m)
        if i < len(reads): out.append(reads[i])
        out.extend(pos.get(i, []))
    out.extend(reads[len(mf):])
    return out


def suffix(A, busy):
    nm = "b" if busy else "i"
    wi = 0
    pre = poll_check("A" + nm, "s60", "v2")
    if busy:
        dm = []
        pre += "\ns_lshl_b32 s83, s70, 1\ns_add_u32 s84, s83, 4096\ns_add_u32 s85, s70, 8\ns_add_u32 s86, s70, 4"
        for base, so, sr, f in ((9152 + 64, "s85", SH, ""), (448, "s83", SWS, " sc1"), (9152 + 4224 + 64, "s86", SH, ""),
                                (4576 + 448, "s84", SWS, " sc1")):
            for j in range(4):
                dm.append((f"s_add_u32 m0, s69, {base}\ns_nop 0\n" if j == 0 else "") +
                          f"buffer_load_dwordx4 v1, {srd(sr)}, {so} offen offset:{1024*j}{f} lds ;@UH")
        g1_stage(A, 8, dm[:8], dm[8:], pre, waits="PA")
    else:
        w8 = [wload(i) for i in range(8)]; wi = 8
        g1_stage(A, 8, w8[:4], w8[4:], pre, waits="PA")
    w9 = [wload(i) for i in range(wi, wi + P["w9"])]; wi += P["w9"]
    g1_stage(A, 9, w9[:len(w9) // 2], w9[len(w9) // 2:])
    A("s_barrier")
    ex = [
        "v_mul_u32_u24 v136, 205, v0\nv_lshrrev_b32 v136, 11, v136\nv_mul_u32_u24 v137, 10, v136",
        "v_sub_u32 v137, v0, v137\nv_mul_u32_u24 v136, 1280, v136\nv_lshl_add_u32 v136, v137, 4, v136",
        "s_mul_i32 s80, s4, 81920\ns_mul_i32 s81, s5, 160\ns_add_u32 s80, s80, s81\ns_mul_i32 s81, s6, 10240\ns_add_u32 s80, s80, s81",
        f"v_add_u32 v2, s80, v136\ns_mul_i32 s87, s6, 1280\ns_add_u32 s87, s87, {QIMG}",
    ]
    for ro in (0, 4, 32, 36):
        ex.append(f"s_mov_b32 exec_lo, -1\ns_mov_b32 exec_hi, 0xff\ns_add_u32 m0, s87, {ro*160}\ns_mov_b32 s82, {ro*1280}\n"
                  f"buffer_load_dwordx4 v2, {srd(SX)}, s82 offen lds ;@Q\ns_mov_b64 exec, -1")
    for g in range(4):
        ex.append(f"s_add_u32 s{76+g}, s6, {g+1}\ns_and_b32 s{76+g}, s{76+g}, 3\ns_lshl_b32 s{76+g}, s{76+g}, 10")
    A(mix(g1_mfmas(1), [], ex))
    A(stamp(9))
    A("s_mov_b32 s80, 0xbfb8aa3b\ns_mov_b32 s81, 0xbfb8aa3b\ns_mov_b32 s82, 1.0\ns_mov_b32 s83, 1.0")
    sb = silu_blocks()
    for k, blk in enumerate(sb):
        if busy and k == 5:
            A("@wait UH")
            A(spread(blk, cv_reads(0), 0, 24))
        else:
            A(blk)
    A(GATE)
    A(f"s_lshl_b32 s84, s4, 7\ns_lshl_b32 s85, s5, 4\ns_add_u32 s84, s84, s85\ns_lshl_b32 s85, s6, 2\ns_add_u32 s84, s84, s85\ns_add_u32 s84, s84, {FB_OFF}")
    A(stamp(10))
    hi = 0
    if busy:
        for r in range(8):
            A("s_waitcnt lgkmcnt(0)")
            ex = []
            if r == P["flagB"]: ex.append("@wait Hst\n" + flag_store("v7", "s84"))
            if r == P["pollB"]: ex.append(poll_load("PB", "v3"))
            if r == P["chkB"]: ex.append("@wait PB\n" + poll_check("B" + nm, "s61", "v3"))
            nw = min(P["cw"][r], 60 - wi) if r < 7 else 60 - wi
            ex += [wload(i) for i in range(wi, wi + nw)]; wi += nw
            if r >= P["chkB"]:
                ex += [hload(i) for i in range(hi, hi + P["chf"][r])]; hi += P["chf"][r]
            A(weave(cv_mfmas(r), cv_reads(r + 1) if r < 7 else [], ex))
            if r in (0, 3, 5): A(stamp({0: 11, 3: 12, 5: 13}[r]))
        assert hi <= 20
    else:
        D = P["idle_depth"]
        k = 0
        while wi < 60:
            A(wload(wi)); wi += 1; k += 1
            if k == D:
                A("@wait Hst\n" + flag_store("v7", "s84"))
            elif k > D:
                A(f"s_waitcnt vmcnt({D})")
        A(stamp(12))
        A(poll_load("PB", "v3") + "\n@wait PB\n" + poll_check("B" + nm, "s61", "v3"))
        A(stamp(13))
        for i in range(P["idle_pre"]): A(hload(i))
        hi = P["idle_pre"]
    A(stamp(14))
    ev = {}
    fill = []
    if busy:
        fill.append(f"v_lshlrev_b32 v8, 3, v0\ns_add_u32 s85, s70, {Y_OFF}")
        for Ap in range(8):
            d = CV_ACC + 4 * Ap
            fill.append(f"v_cvt_pk_bf16_f32 v{d}, v{d}, v{d+1}\nv_cvt_pk_bf16_f32 v{d+1}, v{d+2}, v{d+3}\n"
                        f"buffer_store_dwordx2 {v(d,2)}, v8, {srd(SWS)}, s85 offen offset:{512*Ap} sc1 ;@Yst")
        ev.setdefault(P["flagC"], []).append(
            f"s_lshl_b32 s84, s5, 9\ns_lshl_b32 s85, s91, 2\ns_add_u32 s84, s84, s85\ns_add_u32 s84, s84, {FC_OFF}\n@wait Yst\n"
            + flag_store("v6", "s84"))
    fill += [hload(i) for i in range(hi, 48)]
    ev.setdefault(P["pollC"], []).append(poll_load("PC", "v4"))
    ydma = ["@wait PC\n" + poll_check("C" + nm, "s60", "v4"),
            "v_lshrrev_b32 v3, 3, v0\nv_lshlrev_b32 v3, 12, v3\nv_and_b32 v4, 7, v0\nv_lshl_add_u32 v3, v4, 4, v3\n"
            f"s_mul_i32 s82, s5, {80*4096}\ns_lshl_b32 s83, s4, 7\ns_add_u32 s82, s82, s83\ns_lshl_b32 s83, s6, 15\ns_add_u32 s82, s82, s83\n"
            f"s_add_u32 s82, s82, {Y_OFF}\ns_lshl_b32 s83, s6, 10\ns_add_u32 m0, s83, {YIMG}\ns_add_u32 s84, s82, {32*4096}\n"
            f"buffer_load_dwordx4 v3, {srd(SWS)}, s82 offen sc1 lds ;@Y\ns_add_u32 m0, s83, {YIMG + 4096}\ns_cmp_ge_u32 s6, 2\n"
            f"buffer_load_dwordx4 v3, {srd(SWS)}, s84 offen sc1 lds ;@Y\ns_cbranch_scc1 L_noy{nm}\n"
            f"s_add_u32 m0, s83, {YIMG + 8192}\ns_add_u32 s84, s82, {64*4096}\n"
            f"buffer_load_dwordx4 v3, {srd(SWS)}, s84 offen sc1 lds ;@opt\nL_noy{nm}:"]
    ev.setdefault(P["chkC"], []).extend(ydma)
    fin = [f"s_mul_i32 s84, s6, 15360\nv_add_u32 v8, s84, v1"]
    for g in range(3):
        for dt in range(5):
            fin.append(f"ds_read_b128 {v(16 + (g*5+dt)*4, 4)}, v8 offset:{RED + g*5120 + dt*1024}")
    for dt in range(5):
        fin.append(f"ds_read_b64_tr_b16 {v(76+2*dt,2)}, v10 offset:{dt*2048}")
    for dt in range(5):
        fin.append(f"ds_read_b64 {v(86+2*dt,2)}, v11 offset:{dt*32}")
    addr = ["v_lshrrev_b32 v10, 2, v0\nv_lshlrev_b32 v10, 7, v10\nv_and_b32 v11, 3, v0\nv_lshl_add_u32 v10, v11, 3, v10",
            f"s_lshl_b32 s84, s6, 5\ns_add_u32 s84, s84, {YIMG}\nv_add_u32 v10, s84, v10",
            "v_and_b32 v208, 15, v0\nv_lshrrev_b32 v209, 2, v208\nv_lshlrev_b32 v209, 1, v209\nv_and_b32 v210, 1, v208",
            "v_or_b32 v209, v209, v210\nv_and_b32 v210, 2, v208\nv_lshl_add_u32 v208, v210, 4, v209",
            "v_mul_u32_u24 v208, 160, v208\nv_lshrrev_b32 v209, 4, v0\nv_lshl_add_u32 v208, v209, 3, v208\nv_add_u32 v11, s87, v208"]
    fill += addr
    cnt = 0
    for g in range(4):
        acc = G2_ACC[g & 1]
        if g >= 1:
            pa = G2_ACC[(g - 1) & 1]
            wr = [f"s_mul_i32 s84, s{76+g-1}, 15\ns_add_u32 s84, s84, {RED + (g-1)*5120}\nv_add_u32 v8, s84, v1"]
            wr += [f"ds_write_b128 v8, {v(pa+4*dt,4)} offset:{dt*1024}" for dt in range(5)]
            fill = fill[:2] + wr + fill[2:]
        for i in range(12):
            if g == 3 and i == P["bar"]:
                A(fill); fill = list(fin)
                A("s_waitcnt vmcnt(0) lgkmcnt(0)\ns_barrier")
                A(stamp(19))
            A(ev.get((g, i), []))
            A(f"@wait H{12*g+i}" + (f" W{5*i+4}" if g == 0 else ""))
            for dt in range(5):
                d = acc + 4 * dt
                c = "0" if i == 0 else v(d, 4)
                A(f"v_mfma_f32_16x16x32_bf16 {v(d,4)}, {a(4*(5*i+dt),4)}, {v(hf_reg(12*g+i),4)}, {c}")
                cnt += 1
                if (cnt % 2 == 0 or (g == 3 and i >= P["bar"])) and fill: A(fill.pop(0))
        A(stamp(15 + g))
    if P["bar"] >= 12:
        A(fill); fill = list(fin)
        A("s_waitcnt vmcnt(0) lgkmcnt(0)\ns_barrier")
        A(stamp(19))
    A(fill)
    A(f"s_or_b32 s84, s4, s6\ns_cmp_lg_u32 s84, 0\ns_cbranch_scc1 L_noec{nm}")
    A(f"s_lshl_b32 s84, s5, 7\ns_add_u32 s84, s84, {EC_OFF}\n" + flag_store("v6", "s84") + f"\nL_noec{nm}:")
    A(f"s_or_b32 s84, s5, s6\ns_cmp_lg_u32 s84, 0\ns_cbranch_scc1 L_noer{nm}")
    A(f"s_lshl_b32 s84, s4, 7\ns_add_u32 s84, s84, {ER_OFF}\n" + flag_store("v7", "s84") + f"\nL_noer{nm}:")
    A("s_waitcnt lgkmcnt(0)")
    acc = G2_ACC[1]
    for dt in range(5):
        for hf in range(2):
            b = 16 + dt * 4 + 2 * hf
            o = acc + dt * 4 + 2 * hf
            A(f"v_pk_add_f32 {v(b,2)}, {v(b,2)}, {v(b+20,2)}")
            A(f"v_pk_add_f32 {v(o,2)}, {v(o,2)}, {v(b+40,2)}")
            A(unpack(100, 76 + 2 * dt + hf)); A(unpack(102, 86 + 2 * dt + hf))
            A(f"v_pk_add_f32 {v(b,2)}, {v(b,2)}, {v(o,2)}")
            A("v_pk_mul_f32 v[100:101], v[100:101], v[102:103]")
            A(f"v_pk_mul_f32 {v(b,2)}, {v(b,2)}, v[14:15]")
            A(f"v_pk_fma_f32 {v(b,2)}, v[100:101], v[12:13], {v(b,2)}")
            A(f"v_cvt_pk_bf16_f32 v{104+2*dt+hf}, v{b}, v{b+1}")
        A(f"ds_write_b64 v11, {v(104+2*dt,2)} offset:{dt*32}")
    A("v_add_u32 v8, s87, v1\ns_waitcnt lgkmcnt(0)")
    A(stamp(20))
    for i, ro in enumerate((0, 4, 32, 36)):
        A(f"ds_read_b128 {v(116+4*i,4)}, v8 offset:{ro*160}")
    A("s_mov_b32 exec_lo, -1\ns_mov_b32 exec_hi, 0xff")
    for i, ro in enumerate((0, 4, 32, 36)):
        A(f"s_waitcnt lgkmcnt({3-i})\ns_mov_b32 s82, {ro*1280}")
        A(f"buffer_store_dwordx4 {v(116+4*i,4)}, v2, {srd(SOUT)}, s82 offen")
    if STAMPS:
        A("s_mov_b64 exec, -1\ns_waitcnt vmcnt(0)")
        A(stamp(21))
        A("s_memrealtime s[92:93]\ns_waitcnt lgkmcnt(0)\nv_writelane_b32 v9, s92, 31")
        A("s_getreg_b32 s92, hwreg(HW_REG_XCC_ID)\nv_writelane_b32 v9, s92, 29")
        A(f"s_lshl_b32 s92, s2, 2\ns_add_u32 s92, s92, s6\ns_lshl_b32 s92, s92, 7\ns_add_u32 s92, s92, {STAMP_OFF}")
        A(f"v_lshlrev_b32 v2, 2, v0\ns_mov_b64 exec, 0xffffffff\nbuffer_store_dword v9, v2, {srd(SWS)}, s92 offen")
    A("s_endpgm")


def build():
    global SPINS
    SPINS = []
    pre = Out(); prefix(pre)
    if P["pst"]:
        nl = []; k = 1; skip = 0
        for i, x in enumerate(pre.l):
            if x.startswith("s_memtime s[92:93]") and pre.l[i+1].startswith("s_waitcnt"): skip = 3
            if skip: skip -= 1; continue
            nl.append(x)
            if (x.startswith("buffer_") or x.startswith("s_cselect_b32 s13")) and k < 29 and "opt" not in x:
                nl += stamp(k).split("\n"); k += 1
        pre.l = nl
    global INSUF
    INSUF = True
    sb = Out(); suffix(sb, True)
    si = Out(); suffix(si, False)
    rb_ = resolve_waits(pre.l + ["@@"] + sb.l)
    ri_ = resolve_waits(pre.l + ["@@"] + si.l)
    kb, ki = rb_.index("@@"), ri_.index("@@")
    assert rb_[:kb] == ri_[:ki]
    A = Asm()
    for x in rb_[:kb] + rb_[kb + 1:] + ["L_idle:", "s_nop 7", "s_nop 3"] + ri_[ki + 1:]: A(x.split(";@")[0])
    for s in SPINS: A(s)
    A("L_end:\ns_endpgm")
    kn = NAME + "_kernel"
    txt = header([f"; @launch grid=(256,1,1) block=(256,1,1) lds={LDS_TOTAL}"])
    txt += '.amdgcn_target "amdgcn-amd-amdhsa--gfx950"\n.text\n'
    txt += kernel_text(kn, A.text())
    txt += '.section .rodata,"a"\n' + desc(kn, 512, 256)
    return txt


if __name__ == "__main__":
    out = sys.argv[1] if len(sys.argv) > 1 else f"cdna_kernels/{NAME}.s"
    for kv in sys.argv[2:]:
        if kv == "stamps":
            STAMPS = True
        else:
            k_, v_ = kv.split("=", 1)
            P[k_] = eval(v_)
    open(out, "w").write(build())
```

```python
import sys, os
sys.path.insert(0, os.path.dirname(__file__))
from asmlib import Asm, resolve_waits
from gen1 import header, desc, kernel_text, NAME

U_OFF = 0
W2F_OFF = 5242880
HF_OFF = 7208960
Y_OFF = 13500416
FLAG_OFF = 16138240
EC_OFF, ER_OFF = FLAG_OFF, FLAG_OFF + 1024
FA_OFF, FB_OFF, FC_OFF = FLAG_OFF + 8192, FLAG_OFF + 12288, FLAG_OFF + 16384
WS_SIZE = FLAG_OFF + 24576
STAMP_OFF = WS_SIZE
TAGC = 0x9E3779B9

SX, SK_, SV, SSK, SH, SW1, SW2, SGW, SOUT, SWS = 8, 12, 16, 20, 24, 28, 32, 36, 40, 44
CVL = 98304
CH_BYTES = 17536
GWL = CVL + 3 * CH_BYTES
LDS_TOTAL = GWL + 2560
RED, YIMG, QIMG = 0, 61440, 71680

P = dict(
    rot1=1, rot2=0, rotk=0, pst=0, echo=-1,
    w9=10,
    cw=[4, 6, 8, 8, 8, 8, 8, 0],
    chf=[0, 0, 0, 0, 0, 0, 4, 12],
    flagB=3, pollB=5, chkB=6,
    flagC=(1, 2), pollC=(2, 4), chkC=(3, 0), bar=12,
    idle_depth=12, idle_pre=16, lsc=' sc1',
)
STAMPS = False
INSUF = False


def srd(b): return f"s[{b}:{b+3}]"
def v(b, n=1): return f"v{b}" if n == 1 else f"v[{b}:{b+n-1}]"
def a(b, n=1): return f"a{b}" if n == 1 else f"a[{b}:{b+n-1}]"


class Out:
    def __init__(self):
        self.l = []

    def __call__(self, s):
        if isinstance(s, (list, tuple)):
            for x in s: self(x)
            return
        for line in s.split("\n"):
            line = line.strip()
            if line: self.l.append(line)


def stamp(i, force=False):
    if P["echo"] == i: return "s_memtime s[92:93]\ns_waitcnt lgkmcnt(0)\ns_mov_b32 s100, s92"
    if not STAMPS: return ""
    if P["pst"] and INSUF: return ""
    return f"s_memtime s[92:93]\ns_waitcnt lgkmcnt(0)\nv_writelane_b32 v9, s92, {i}"


def unpack(d, s):
    return f"v_lshlrev_b32 v{d}, 16, v{s}\nv_and_b32 v{d+1}, 0xffff0000, v{s}"


def spread(main, groups, lo=0, hi=None):
    hi = len(main) if hi is None else hi
    n = len(groups)
    pos = {}
    for k in range(n):
        pos.setdefault(lo + (k * (hi - lo)) // n, []).append(groups[k])
    out = []
    for i, m in enumerate(main):
        out.append(m)
        out.extend(pos.get(i, []))
    return out


SPINS = []


def poll_check(name, tagreg, vaddr):
    SPINS.append(f"""L_spin_{name}:
s_mov_b32 s90, 0x40000
L_spinl_{name}:
buffer_load_dword v5, {vaddr}, {srd(SWS)}, 0 offen sc1
s_waitcnt vmcnt(0)
v_cmp_ne_u32 vcc, {tagreg}, v5
s_cbranch_vccz L_ret_{name}
s_sub_u32 s90, s90, 1
s_cmp_lg_u32 s90, 0
s_cbranch_scc1 L_spinl_{name}
s_branch L_ret_{name}""")
    return f"v_cmp_ne_u32 vcc, {tagreg}, v5\ns_cbranch_vccnz L_spin_{name}\nL_ret_{name}:"


def poll_load(tag, vaddr):
    return f"buffer_load_dword v5, {vaddr}, {srd(SWS)}, 0 offen sc1 ;@{tag}"


def flag_store(vtag, soff):
    return f"s_mov_b64 exec, 1\nbuffer_store_dword {vtag}, off, {srd(SWS)}, {soff} sc1\ns_mov_b64 exec, -1"


G1_ACC = 16
G1_WF = (64, 88)
G1_XF = (112, 120)
G1_GW = (128, 132)
G1_WV = 224
G1_XV = 230
G1_RA = 232
G1_GA = 252
ZACC = 12
CV_ACC = 96
CV_U = (128, 160)
CV_H = (192, 224)
G2_ACC = (216, 236)


def hf_reg(slot):
    return 16 + 4 * slot


def g1_dma(stage):
    buf = stage % 3
    out = []
    for j in range(2):
        out.append(f"s_add_u32 m0, s67, {buf*32768 + j*1024}\ns_nop 0\n"
                   f"buffer_load_dwordx4 v{G1_XV+j}, {srd(SX)}, s64 offen lds ;@S{stage}")
    for j in range(6):
        out.append(f"s_add_u32 m0, s66, {buf*32768 + j*1024}\ns_nop 0\n"
                   f"buffer_load_dwordx4 v{G1_WV+j}, {srd(SW1)}, s65 offen lds ;@S{stage}")
    out[-1] += ("\ns_add_u32 s64, s64, 128\ns_add_u32 s65, s65, 196608\ns_cmp_eq_u32 s64, 1280\n"
                "s_cselect_b32 s64, 0, s64\ns_cselect_b32 s65, 0, s65")
    return out


def g1_reads(stage, kk):
    buf = stage % 3
    ra = G1_RA + 10 * (buf >> 1)
    bo = (buf & 1) * 32768
    out = []
    for sl in range(2):
        out.append(f"ds_read_b128 {v(G1_XF[kk] + 4*sl, 4)}, v{ra+6+2*kk+sl} offset:{bo}")
    for t in range(6):
        for h in range(2):
            out.append(f"ds_read_b64_tr_b16 {v(G1_WF[kk] + 4*t + 2*h, 2)}, v{ra+t} offset:{bo + kk*12288 + h*1536}")
    out.append(f"ds_read_b128 {v(G1_GW[kk], 4)}, v{G1_GA} offset:{stage*128 + kk*64}")
    return out


def g1_mfmas(kk, first=False):
    out = []
    for t in range(6):
        for sl in range(2):
            d = G1_ACC + (sl * 6 + t) * 4
            c = "0" if first else v(d, 4)
            out.append(f"v_mfma_f32_16x16x32_bf16 {v(d,4)}, {v(G1_WF[kk]+4*t,4)}, {v(G1_XF[kk]+4*sl,4)}, {c}")
    c = "0" if first else v(ZACC, 4)
    out.append(f"v_mfma_f32_16x16x32_bf16 {v(ZACC,4)}, {v(G1_GW[kk],4)}, {v(G1_XF[kk],4)}, {c}")
    return out


def mix(mf, reads, extras):
    out = []
    ri = 0
    n = len(extras)
    pos = {}
    for k in range(n):
        pos.setdefault((k * len(mf)) // n, []).append(extras[k])
    for i, m in enumerate(mf):
        out.extend(pos.get(i, []))
        out.append(m)
        for _ in range(2):
            if ri < len(reads):
                out.append(reads[ri]); ri += 1
    out.extend(reads[ri:])
    return out


def g1_stage(A, t, ea, eb, pre=None, waits=""):
    A(f"@wait S{t} {waits}\ns_barrier")
    if pre: A(pre)
    if t == 0:
        A(g1_reads(0, 0)); A(ea)
    else:
        A(mix(g1_mfmas(1), g1_reads(t, 0), ea))
    A("s_waitcnt lgkmcnt(0)")
    A(mix(g1_mfmas(0, first=(t == 0)), g1_reads(t, 1), eb))
    A("s_waitcnt lgkmcnt(0)")


def wload(n):
    i, dt = divmod(n, 5)
    if dt < 4:
        return f"buffer_load_dwordx4 {a(4*n,4)}, v1, {srd(SWS)}, s71 offen offset:{dt*1024}{P['lsc']} ;@W{n}"
    return (f"s_add_u32 s74, s71, 4096\ns_add_u32 s71, s71, 5120\n"
            f"buffer_load_dwordx4 {a(4*n,4)}, v1, {srd(SWS)}, s74 offen{P['lsc']} ;@W{n}\n"
            "s_cmp_eq_u32 s71, s73\ns_cselect_b32 s71, s72, s71")


def hload(slot):
    g, i = divmod(slot, 12)
    return (f"s_add_u32 s75, s{48+i}, s{76+g}\n"
            f"buffer_load_dwordx4 {v(hf_reg(slot),4)}, v1, {srd(SWS)}, s75 offen{P['lsc']} ;@H{slot}")


def prefix(A):
    KIMG, VIMG, W2IMG = CVL, CVL + 11136, CVL + 22272
    A("s_cmp_ge_u32 s2, 256\ns_cbranch_scc1 L_end")
    for b, o in ((SK_, 8), (SV, 16), (SWS, 96), (SW2, 64), (SSK, 24), (SGW, 72), (SX, 0), (SW1, 56), (SH, 32), (88, 40),
                 (SOUT, 80)):
        A(f"s_load_dwordx2 s[{b}:{b+1}], s[0:1], {o}")
    if P["echo"] >= 0: A("s_memtime s[98:99]")
    if STAMPS:
        A("s_memrealtime s[94:95]\ns_memtime s[92:93]\nv_mov_b32 v9, 0")
    A("v_lshrrev_b32 v1, 6, v0\nv_and_b32 v0, 63, v0\nv_readfirstlane_b32 s6, v1\nv_lshlrev_b32 v1, 4, v0")
    A("s_lshr_b32 s3, s2, 3\ns_and_b32 s7, s2, 7")
    A("s_lshr_b32 s4, s7, 1\ns_lshl_b32 s4, s4, 3\ns_lshr_b32 s5, s3, 2\ns_add_u32 s4, s4, s5")
    A("s_and_b32 s5, s7, 1\ns_lshl_b32 s5, s5, 2\ns_and_b32 s3, s3, 3\ns_add_u32 s5, s5, s3")
    for b, n in ((SX, 2621440), (SK_, 2621440), (SSK, 5120), (SH, 2621440), (SW1, 1966080),
                 (SW2, 1966080), (SGW, 1280), (SOUT, 2621440), (SWS, WS_SIZE + (131072 if STAMPS else 0))):
        A(f"s_mov_b32 s{b+2}, {n}\ns_mov_b32 s{b+3}, 0x00020000")
    A("v_mul_u32_u24 v16, 205, v0\nv_lshrrev_b32 v16, 11, v16\nv_mul_u32_u24 v17, 10, v16\nv_sub_u32 v17, v0, v17")
    A("v_mul_u32_u24 v18, 1280, v16\nv_lshl_add_u32 v18, v17, 4, v18")
    A("s_mul_i32 s7, s4, 81920\ns_mul_i32 s3, s5, 160\ns_add_u32 s7, s7, s3")
    A("s_and_b32 s74, s6, 1\ns_mul_i32 s75, s74, 40960\ns_add_u32 s75, s75, s7")
    A("v_add_u32 v19, s75, v18\nv_subrev_u32 v20, 5120, v19")
    A(f"s_lshr_b32 s80, s6, 1\ns_mul_i32 s80, s80, 11136\ns_mul_i32 s75, s74, 5248\ns_add_u32 s80, s80, s75\ns_add_u32 s80, s80, {KIMG}")
    A(f"s_mul_i32 s81, s74, 640\ns_mul_i32 s82, s6, 640\ns_add_u32 s82, s82, {GWL}")
    for t in range(3):
        A(f"s_lshl_b32 s83, s6, 6\ns_add_u32 s83, s83, {256 * t}")
        A(f"v_add_u32 v26, s83, v0\nv_mul_u32_u24 v27, 6554, v26\nv_lshrrev_b32 v27, 16, v27")
        A(f"v_mul_u32_u24 v28, 10, v27\nv_sub_u32 v28, v26, v28\nv_mul_u32_u24 v27, 1280, v27\nv_lshl_add_u32 v{21+t}, v28, 4, v27")
    A(f"s_sub_u32 s83, s7, 655360\ns_lshl_b32 s84, s6, 10\ns_add_u32 s84, s84, {W2IMG}")
    A("v_lshrrev_b32 v24, 3, v0\nv_lshlrev_b32 v24, 5, v24")
    A("s_mul_i32 s85, s5, 640\ns_mul_i32 s86, s6, 160\ns_add_u32 s85, s85, s86")
    A(f"s_lshl_b32 s86, s5, 7\ns_add_u32 s86, s86, {EC_OFF}\ns_lshl_b32 s87, s4, 7\ns_add_u32 s87, s87, {ER_OFF}")
    A("s_mul_i32 s74, s6, 49152\ns_mul_i32 s75, s5, 384\ns_add_u32 s74, s74, s75\ns_add_u32 s75, s74, 24576")
    for j in range(3):
        A(f"v_add_u32 v26, {64*j}, v0\nv_mul_u32_u24 v27, 2731, v26\nv_lshrrev_b32 v27, 16, v27")
        A("v_mul_u32_u24 v28, 24, v27\nv_sub_u32 v28, v26, v28")
        A("v_and_b32 v29, 2, v27\nv_xor_b32 v28, v28, v29\nv_mul_u32_u24 v27, 3072, v27")
        A(f"v_lshl_add_u32 v29, v28, 4, v27\nv_add_u32 v{G1_WV+j}, s74, v29")
        A(f"v_xor_b32 v28, 4, v28\nv_lshl_add_u32 v29, v28, 4, v27\nv_add_u32 v{G1_WV+3+j}, s75, v29")
    A("v_lshrrev_b32 v26, 3, v0\nv_and_b32 v27, 7, v0\nv_xor_b32 v27, v27, v26")
    A("v_lshrrev_b32 v28, 2, v26\nv_lshlrev_b32 v28, 1, v28\nv_and_b32 v29, 1, v26\nv_or_b32 v28, v28, v29")
    A("v_and_b32 v29, 2, v26\nv_lshl_add_u32 v28, v29, 4, v28")
    A("v_mul_u32_u24 v28, 1280, v28\nv_lshl_add_u32 v28, v27, 4, v28")
    A("s_mul_i32 s74, s4, 81920\ns_mul_i32 s75, s6, 10240\ns_add_u32 s74, s74, s75")
    A(f"v_add_u32 v{G1_XV}, s74, v28\nv_add_u32 v{G1_XV+1}, 5120, v{G1_XV}")
    A("s_mul_i32 s66, s6, 6144\ns_lshl_b32 s67, s6, 11\ns_add_u32 s67, s67, 24576")
    if P["rot1"]:
        A("s_and_b32 s74, s4, 7\ns_and_b32 s75, s5, 3\ns_mul_i32 s75, s75, 3\ns_add_u32 s74, s74, s75")
        A("s_sub_u32 s75, s74, 10\ns_cmp_ge_u32 s74, 10\ns_cselect_b32 s74, s75, s74")
        A("s_lshl_b32 s64, s74, 7\ns_mul_i32 s65, s74, 196608")
    else:
        A("s_mov_b32 s64, 0\ns_mov_b32 s65, 0")
    A(f"v_lshrrev_b32 v26, 4, v0\ns_add_u32 s74, s64, {GWL}\nv_lshlrev_b32 v26, 4, v26\nv_add_u32 v{G1_GA}, s74, v26")
    A("s_lshl_b32 s91, s6, 5\ns_add_u32 s91, s91, s4\ns_cmp_lt_u32 s91, 80\ns_cselect_b64 s[62:63], -1, 0\ns_cselect_b32 s91, s91, 0")
    A("s_mul_i32 s70, s5, 80\ns_add_u32 s70, s70, s91\ns_lshl_b32 s96, s70, 1\ns_and_b32 s96, s96, -4\ns_lshl_b32 s70, s70, 12")
    A("s_cmp_lt_u32 s6, 2")
    A("s_waitcnt lgkmcnt(0)")
    if P["echo"] >= 0: A("s_mov_b32 s101, s98\ns_mov_b32 s100, s98")
    if STAMPS:
        A("v_writelane_b32 v9, s92, 0\nv_writelane_b32 v9, s94, 30")
    A(stamp(22))
    A(f"s_cselect_b32 s{SK_}, s{SK_}, s{SV}\ns_cselect_b32 s{SK_+1}, s{SK_+1}, s{SV+1}")
    A("s_mov_b32 exec_lo, -1\ns_mov_b32 exec_hi, 0xff")
    for i in range(9):
        A(f"s_add_u32 m0, s80, {(i >> 1) * 1312 + (i & 1) * 640}")
        if i == 0:
            A(f"s_nop 0\nbuffer_load_dwordx4 v20, {srd(SK_)}, 0 offen lds ;@P1")
        else:
            A(f"s_mov_b32 s74, {(i - 1) * 5120}\nbuffer_load_dwordx4 v19, {srd(SK_)}, s74 offen lds ;@P1")
    A(f"s_mov_b32 m0, s82\ns_nop 0\nbuffer_load_dwordx4 v1, {srd(SGW)}, s81 offen lds ;@P1")
    A("s_mov_b64 exec, -1")
    A(f"buffer_load_dword v6, off, {srd(SWS)}, s86 sc1 ;@P1\nbuffer_load_dword v7, off, {srd(SWS)}, s87 sc1 ;@P1")
    A("s_cmp_lt_u32 s4, 8\ns_cbranch_scc1 L_now2a")
    for t in range(3):
        if t == 2:
            A("s_cmp_ge_u32 s6, 2\ns_cbranch_scc1 L_now2a")
        A(f"s_add_u32 m0, s84, {4096*t}\ns_nop 0")
        A(f"buffer_load_dwordx4 v{21+t}, {srd(SW2)}, s83 offen lds ;@opt")
    A("L_now2a:")
    A(f"buffer_load_dwordx4 v[136:139], v24, {srd(SSK)}, s85 offen ;@P1")
    A(f"buffer_load_dwordx4 v[140:143], v24, {srd(SSK)}, s85 offen offset:16 ;@P1")
    A(stamp(23))
    A(g1_dma(0))
    A(stamp(24))
    A(f"s_add_u32 s94, s{SH}, s70\ns_addc_u32 s95, s{SH+1}, 0\ns_load_dwordx2 s[94:95], s[94:95], 0\ns_load_dword s96, s[88:89], s96")
    A(stamp(1))
    A("v_lshrrev_b32 v26, 4, v0\nv_lshrrev_b32 v27, 2, v0\nv_and_b32 v27, 3, v27")
    A("v_lshl_add_u32 v28, v26, 3, v27\nv_mul_u32_u24 v28, 384, v28\nv_and_b32 v29, 3, v0\nv_lshl_add_u32 v28, v29, 3, v28")
    A("v_lshrrev_b32 v29, 1, v27\nv_and_b32 v30, 1, v26\nv_lshl_add_u32 v29, v30, 1, v29")
    A("s_and_b32 s74, s6, 1\ns_mul_i32 s74, s74, 6")
    for t in range(6):
        A(f"s_add_u32 s75, s74, {t}\nv_xor_b32 v30, s75, v29\nv_lshl_add_u32 v{G1_RA+t}, v30, 5, v28")
    A("v_and_b32 v27, 15, v0\nv_and_b32 v28, 7, v0\nv_xor_b32 v28, v28, v26\nv_lshlrev_b32 v27, 7, v27")
    A("s_lshl_b32 s74, s6, 11\ns_add_u32 s74, s74, 24576")
    A(f"v_add_u32 v27, s74, v27\nv_lshl_add_u32 v{G1_RA+6}, v28, 4, v27\nv_xor_b32 v{G1_RA+7}, 2048, v{G1_RA+6}")
    A(f"v_xor_b32 v{G1_RA+8}, 64, v{G1_RA+6}\nv_xor_b32 v{G1_RA+9}, 64, v{G1_RA+7}")
    for i in range(10):
        A(f"v_add_u32 v{G1_RA+10+i}, 65536, v{G1_RA+i}")
    if P["rotk"]:
        A("s_add_u32 s68, s6, s5\ns_and_b32 s68, s68, 3")
    else:
        A("s_mov_b32 s68, s6")
    if P["rot2"]:
        A("s_and_b32 s74, s4, 7\ns_mul_i32 s74, s74, 3\ns_lshr_b32 s74, s74, 1")
    else:
        A("s_mov_b32 s74, 0")
    A(f"s_mul_i32 s72, s5, 240\ns_mul_i32 s75, s68, 60\ns_add_u32 s72, s72, s75\ns_lshl_b32 s72, s72, 10\ns_add_u32 s72, s72, {W2F_OFF}")
    A("s_add_u32 s73, s72, 61440\ns_mul_i32 s75, s74, 5120\ns_add_u32 s71, s72, s75")
    A(f"s_mul_i32 s75, s4, 48\ns_mul_i32 s76, s68, 12\ns_add_u32 s75, s75, s76\ns_lshl_b32 s75, s75, 12\ns_add_u32 s75, s75, {HF_OFF}")
    A("s_add_u32 s76, s75, 49152\ns_lshl_b32 s74, s74, 12\ns_add_u32 s48, s75, s74")
    for i in range(1, 12):
        A(f"s_add_u32 s{48+i}, s{47+i}, 4096\ns_cmp_eq_u32 s{48+i}, s76\ns_cselect_b32 s{48+i}, s75, s{48+i}")
    A("s_mul_i32 s74, s91, 205\ns_lshr_b32 s74, s74, 12\ns_lshl_b32 s74, s74, 7")
    A("v_lshlrev_b32 v2, 2, v0\nv_add_u32 v2, s74, v2")
    A("v_lshrrev_b32 v26, 3, v0\nv_and_b32 v26, 3, v26\nv_and_b32 v27, 7, v0\nv_min_u32 v28, 5, v27")
    A("s_mul_i32 s74, s68, 24\ns_add_u32 s74, s74, 32\nv_lshlrev_b32 v28, 2, v28\nv_lshl_add_u32 v28, v26, 7, v28\nv_add_u32 v28, s74, v28")
    A(f"v_cmp_gt_u32 vcc, 32, v0\ns_lshl_b32 s74, s5, 9\ns_add_u32 s74, s74, {FA_OFF}\nv_cndmask_b32 v2, v28, v2, vcc\nv_add_u32 v2, s74, v2")
    A(f"s_lshl_b32 s74, s4, 7\ns_lshl_b32 s75, s68, 5\ns_add_u32 s74, s74, s75\ns_add_u32 s74, s74, {FB_OFF}")
    A("v_lshlrev_b32 v27, 2, v27\nv_add_u32 v3, s74, v27")
    A("s_cmp_lt_u32 s6, 2\ns_cselect_b32 s74, 2, 1\nv_min_u32 v26, s74, v26\nv_lshl_add_u32 v4, v26, 7, v27")
    A(f"s_lshl_b32 s74, s5, 9\ns_lshl_b32 s75, s6, 5\ns_add_u32 s74, s74, s75\ns_add_u32 s74, s74, {FC_OFF}\nv_add_u32 v4, s74, v4")
    A(f"s_mul_i32 s69, s6, {CH_BYTES}\ns_add_u32 s69, s69, {CVL}")
    A("v_and_b32 v26, 1, v0\nv_mul_u32_u24 v26, 4576, v26\nv_and_b32 v27, 14, v0\nv_lshl_add_u32 v26, v27, 5, v26")
    A("v_lshrrev_b32 v27, 4, v0\nv_lshlrev_b32 v28, 4, v27\nv_sub_u32 v26, v26, v28\ns_add_u32 s74, s69, 48\nv_add_u32 v10, s74, v26")
    A("v_and_b32 v26, 15, v0\nv_lshlrev_b32 v26, 2, v26\nv_add_u32 v26, v26, v28")
    A("v_and_b32 v27, 1, v0\nv_mul_u32_u24 v27, 4228, v27\nv_sub_u32 v26, v26, v27")
    A(f"s_add_u32 s74, s69, {9152 + 4224}\nv_add_u32 v11, s74, v26")
    A("s_mul_i32 s74, s4, 48\ns_mul_i32 s75, s5, 6\ns_add_u32 s74, s74, s75\ns_and_b32 s75, s6, 1\ns_mul_i32 s75, s75, 3\ns_add_u32 s74, s74, s75")
    A(f"s_lshl_b32 s74, s74, 2\ns_add_u32 s74, s74, s6\ns_lshl_b32 s97, s74, 10\ns_add_u32 s97, s97, {HF_OFF}\ns_xor_b32 s98, s97, 1024")
    assert HF_OFF % 4096 == 0
    A("v_and_b32 v58, 7, v0\nv_mul_u32_u24 v58, 1312, v58\nv_lshrrev_b32 v26, 3, v0\nv_lshl_add_u32 v58, v26, 3, v58")
    A(f"s_mul_i32 s74, s6, 40\ns_add_u32 s74, s74, {KIMG}\nv_add_u32 v58, s74, v58")
    A("v_lshrrev_b32 v59, 2, v0\nv_mul_u32_u24 v59, 160, v59\nv_and_b32 v27, 3, v0\nv_lshl_add_u32 v59, v27, 3, v59")
    for t in range(3):
        A(f"s_add_u32 s74, s6, {4*t}\ns_lshl_b32 s75, s74, 5\ns_cmp_ge_u32 s74, 5\ns_cselect_b32 s74, 4960, 0\ns_add_u32 s75, s75, s74")
        A(f"s_add_u32 s75, s75, {W2IMG}\nv_add_u32 v{193+t}, s75, v59")
    A("v_lshlrev_b32 v192, 15, v26\nv_and_b32 v27, 7, v0\nv_lshl_add_u32 v192, v27, 4, v192")
    A(f"s_mul_i32 s83, s5, {80*8192}\ns_mul_i32 s74, s6, {20*8192}\ns_add_u32 s83, s83, s74\ns_lshl_b32 s74, s4, 7\ns_add_u32 s83, s83, s74")
    A(f"s_mul_i32 s84, s5, 240\ns_mul_i32 s74, s4, 10\ns_add_u32 s84, s84, s74\ns_add_u32 s84, s84, s6\ns_lshl_b32 s84, s84, 10\ns_add_u32 s84, s84, {W2F_OFF - 80*1024}")
    A(f"s_lshl_b32 s85, s5, 9\ns_lshl_b32 s74, s6, 7\ns_add_u32 s85, s85, s74\ns_lshl_b32 s74, s4, 2\ns_add_u32 s85, s85, s74\ns_add_u32 s85, s85, {FA_OFF}")
    A(stamp(25))
    if STAMPS: A("s_waitcnt vmcnt(16)\n" + stamp(26) + "\ns_waitcnt vmcnt(12)\n" + stamp(27) + "\n@wait P1\n" + stamp(28))
    A("@wait P1\ns_barrier")
    A(stamp(2))
    ko = lambda i: (i >> 3) * 1312 + (i & 7) * 160
    for i in range(12):
        A(f"ds_read_b64 v[{16+2*i}:{17+2*i}], v58 offset:{ko(i)}")
    for i in range(3, 12):
        A(f"ds_read_b64 v[{40+2*(i-3)}:{41+2*(i-3)}], v58 offset:{11136 + ko(i)}")
    for t in range(3):
        A(f"ds_read_b64_tr_b16 v[{180+4*t}:{181+4*t}], v{193+t}")
        A(f"ds_read_b64_tr_b16 v[{182+4*t}:{183+4*t}], v{193+t} offset:2560")
    A(f"v_add_u32 v6, {TAGC:#x}, v6\nv_add_u32 v7, {TAGC:#x}, v7")
    for c in range(4):
        A(f"v_lshlrev_b32 v{60+c}, 16, v{136+2*c}\nv_and_b32 v{64+c}, 0xffff0000, v{136+2*c}")
        A(f"v_lshlrev_b32 v{68+c}, 16, v{137+2*c}\nv_and_b32 v{72+c}, 0xffff0000, v{137+2*c}")
    A("v_readfirstlane_b32 s60, v6\nv_readfirstlane_b32 s61, v7")
    A("s_waitcnt lgkmcnt(0)")
    A("s_cmp_lt_u32 s4, 8\ns_cbranch_scc1 L_now2c")
    for t in range(3):
        if t == 2:
            A("s_cmp_ge_u32 s6, 2\ns_cbranch_scc1 L_now2c")
        A(f"buffer_store_dwordx4 v[{180+4*t}:{183+4*t}], v1, {srd(SWS)}, s84 offen sc1 ;@opt\ns_add_u32 s84, s84, 4096")
    A("L_now2c:")
    B = Out()
    for i in range(12):
        B(unpack(76 + 4 * i, 16 + 2 * i)); B(unpack(78 + 4 * i, 17 + 2 * i))
    for ip in range(9):
        for hf in range(2):
            o = 144 + 4 * ip + 2 * hf
            for j in range(4):
                kr = 76 + 4 * (ip + 3 - j) + 2 * hf
                tr = 60 + 4 * j + 2 * hf
                if j == 0:
                    B(f"v_pk_mul_f32 v[{o}:{o+1}], v[{kr}:{kr+1}], v[{tr}:{tr+1}]")
                else:
                    B(f"v_pk_fma_f32 v[{o}:{o+1}], v[{kr}:{kr+1}], v[{tr}:{tr+1}], v[{o}:{o+1}]")
            B(unpack(58, 40 + 2 * ip + hf))
            B(f"v_pk_mul_f32 v[{o}:{o+1}], v[{o}:{o+1}], v[58:59]")
    A(spread(B.l, g1_dma(1) + g1_dma(2)))
    A(stamp(3))
    A("s_mov_b32 exec_lo, -1\ns_mov_b32 exec_hi, 0xff")
    for c in range(4):
        for rho in range(2):
            d = 16 + 4 * (2 * c + rho)
            for q in range(4):
                A(f"v_cvt_pk_bf16_f32 v{d+q}, v{144 + 4*(7+rho-2*q) + c}, v{144 + 4*(6+rho-2*q) + c}")
            A(f"buffer_store_dwordx4 v[{d}:{d+3}], v192, {srd(SWS)}, s83 offen sc1 ;@Ust\ns_add_u32 s83, s83, 4096")
    A("s_mov_b64 exec, -1")
    A(stamp(4))
    pads = [
        "v_mov_b32 v144, 0\nv_mov_b32 v145, 0\nv_mov_b32 v146, 0\nv_mov_b32 v147, 0",
        "v_lshrrev_b32 v148, 5, v0\nv_mul_u32_u24 v148, 4576, v148\nv_and_b32 v149, 31, v0",
        "v_lshl_add_u32 v148, v149, 4, v148\nv_add_u32 v148, s69, v148\ns_and_b32 exec_lo, s62, 0x0fffffff\ns_and_b32 exec_hi, s62, 0x0fffffff\n"
        "ds_write_b128 v148, v[144:147]\ns_mov_b64 exec, -1",
        "s_bitcmp1_b32 s70, 12\ns_cselect_b32 s80, 0, 16\ns_lshl_b32 s96, s96, s80\ns_and_b32 s96, s96, 0xffff0000",
        "s_lshl_b32 s80, s94, 16\nv_mov_b32 v148, s80\nv_add_f32 v148, s96, v148\ns_and_b32 s80, s94, 0xffff0000\nv_mov_b32 v149, s80",
        "v_cvt_pk_bf16_f32 v148, v148, v149\nv_mov_b32 v150, 0\nv_readfirstlane_b32 s80, v148",
        "v_lshrrev_b32 v148, 4, v0\nv_mul_u32_u24 v148, 4224, v148\nv_and_b32 v149, 15, v0\nv_lshl_add_u32 v148, v149, 2, v148",
        "v_writelane_b32 v150, s80, 14\nv_writelane_b32 v150, s95, 15\nv_writelane_b32 v150, s80, 31",
        "s_add_u32 s80, s69, 9152\nv_add_u32 v148, s80, v148\ns_mov_b32 exec_lo, s62\ns_mov_b32 exec_hi, 0\n"
        "ds_write_b32 v148, v150\ns_mov_b64 exec, -1",
    ]
    for t in range(8):
        d = g1_dma(t + 2) if t >= 1 else []
        ea, eb = d[:4], d[4:]
        pre = None
        if t == 0: eb = pads
        if t == 3: pre = flag_store("v6", "s85")
        if t == 6: eb = eb + [poll_load("PA", "v2")]
        g1_stage(A, t, ea, eb, pre, waits=("Ust" if t == 3 else ""))
        if t in (0, 1, 3, 7): A(stamp({0: 5, 1: 6, 3: 7, 7: 8}[t]))
    A("s_cmp_eq_u32 s62, 0\ns_cbranch_scc1 L_idle")


def silu_blocks():
    out = []
    for tp in range(3):
        for sl in range(2):
            d = G1_ACC + (sl * 6 + 2 * tp) * 4
            T = 64 + ((tp * 2 + sl) & 1) * 16
            B = Out()
            for q in range(4):
                B(f"v_pk_mul_f32 {v(T+2*q,2)}, {v(d+2*q,2)}, s[80:81]")
            for q in range(8):
                B(f"v_exp_f32 v{T+q}, v{T+q}")
            for q in range(4):
                B(f"v_pk_add_f32 {v(T+2*q,2)}, {v(T+2*q,2)}, s[82:83]")
            for q in range(8):
                B(f"v_rcp_f32 v{T+q}, v{T+q}")
            for q in range(4):
                B(f"v_pk_mul_f32 {v(T+2*q,2)}, {v(T+2*q,2)}, {v(d+2*q,2)}")
            for q in range(4):
                B(f"v_cvt_pk_bf16_f32 v{T+8+q}, v{T+2*q}, v{T+2*q+1}")
            B(f"s_add_u32 s75, s{97+sl}, {tp*4096}")
            B(f"buffer_store_dwordx4 {v(T+8,4)}, v1, {srd(SWS)}, s75 offen sc1 ;@Hst")
            out.append(B.l)
    return out


GATE = """v_cvt_pk_bf16_f32 v12, v12, v12
v_lshlrev_b32 v12, 16, v12
v_mul_f32 v12, 0xbfb8aa3b, v12
v_exp_f32 v12, v12
v_add_f32 v12, 1.0, v12
v_rcp_f32 v12, v12
v_cvt_pk_bf16_f32 v12, v12, v12
v_lshlrev_b32 v12, 16, v12
v_sub_f32 v14, 1.0, v12
v_cvt_pk_bf16_f32 v14, v14, v14
v_lshlrev_b32 v14, 16, v14
v_mov_b32 v13, v12
v_mov_b32 v15, v14"""


def cv_reads(r):
    s = r & 1
    out = []
    for p in range(8):
        out.append(f"ds_read_b128 {v(CV_U[s]+4*p,4)}, v10 offset:{512*p + 64*r}")
        for h in range(2):
            out.append(f"ds_read_b64 {v(CV_H[s]+4*p+2*h,2)}, v11 offset:{64*(7-r) + 512*p + 8*h}")
    return out


def cv_mfmas(r):
    s = r & 1
    out = []
    for Ap in range(8):
        for p in range(Ap + 1):
            d = CV_ACC + 4 * Ap
            c = "0" if (r == 0 and p == 0) else v(d, 4)
            out.append(f"v_mfma_f32_16x16x32_bf16 {v(d,4)}, {v(CV_U[s]+4*p,4)}, {v(CV_H[s]+4*(Ap-p),4)}, {c}")
    return out


def weave(mf, reads, extras):
    out = []
    n = len(extras)
    pos = {}
    for k in range(n):
        pos.setdefault(((2 * k + 1) * len(mf)) // (2 * n), []).append(extras[k])
    for i, m in enumerate(mf):
        out.append(m)
        if i < len(reads): out.append(reads[i])
        out.extend(pos.get(i, []))
    out.extend(reads[len(mf):])
    return out


def suffix(A, busy):
    nm = "b" if busy else "i"
    wi = 0
    pre = poll_check("A" + nm, "s60", "v2")
    if busy:
        dm = []
        pre += "\ns_lshl_b32 s83, s70, 1\ns_add_u32 s84, s83, 4096\ns_add_u32 s85, s70, 8\ns_add_u32 s86, s70, 4"
        for base, so, sr, f in ((9152 + 64, "s85", SH, ""), (448, "s83", SWS, " sc1"), (9152 + 4224 + 64, "s86", SH, ""),
                                (4576 + 448, "s84", SWS, " sc1")):
            for j in range(4):
                dm.append((f"s_add_u32 m0, s69, {base}\ns_nop 0\n" if j == 0 else "") +
                          f"buffer_load_dwordx4 v1, {srd(sr)}, {so} offen offset:{1024*j}{f} lds ;@UH")
        g1_stage(A, 8, dm[:8], dm[8:], pre, waits="PA")
    else:
        w8 = [wload(i) for i in range(8)]; wi = 8
        g1_stage(A, 8, w8[:4], w8[4:], pre, waits="PA")
    w9 = [wload(i) for i in range(wi, wi + P["w9"])]; wi += P["w9"]
    g1_stage(A, 9, w9[:len(w9) // 2], w9[len(w9) // 2:])
    A("s_barrier")
    ex = [
        "v_mul_u32_u24 v136, 205, v0\nv_lshrrev_b32 v136, 11, v136\nv_mul_u32_u24 v137, 10, v136",
        "v_sub_u32 v137, v0, v137\nv_mul_u32_u24 v136, 1280, v136\nv_lshl_add_u32 v136, v137, 4, v136",
        "s_mul_i32 s80, s4, 81920\ns_mul_i32 s81, s5, 160\ns_add_u32 s80, s80, s81\ns_mul_i32 s81, s6, 10240\ns_add_u32 s80, s80, s81",
        f"v_add_u32 v2, s80, v136\ns_mul_i32 s87, s6, 1280\ns_add_u32 s87, s87, {QIMG}",
    ]
    for ro in (0, 4, 32, 36):
        ex.append(f"s_mov_b32 exec_lo, -1\ns_mov_b32 exec_hi, 0xff\ns_add_u32 m0, s87, {ro*160}\ns_mov_b32 s82, {ro*1280}\n"
                  f"buffer_load_dwordx4 v2, {srd(SX)}, s82 offen lds ;@Q\ns_mov_b64 exec, -1")
    for g in range(4):
        ex.append(f"s_add_u32 s{76+g}, s6, {g+1}\ns_and_b32 s{76+g}, s{76+g}, 3\ns_lshl_b32 s{76+g}, s{76+g}, 10")
    A(mix(g1_mfmas(1), [], ex))
    A(stamp(9))
    A("s_mov_b32 s80, 0xbfb8aa3b\ns_mov_b32 s81, 0xbfb8aa3b\ns_mov_b32 s82, 1.0\ns_mov_b32 s83, 1.0")
    sb = silu_blocks()
    for k, blk in enumerate(sb):
        if busy and k == 5:
            A("@wait UH")
            A(spread(blk, cv_reads(0), 0, 24))
        else:
            A(blk)
    A(GATE)
    A(f"s_lshl_b32 s84, s4, 7\ns_lshl_b32 s85, s5, 4\ns_add_u32 s84, s84, s85\ns_lshl_b32 s85, s6, 2\ns_add_u32 s84, s84, s85\ns_add_u32 s84, s84, {FB_OFF}")
    A(stamp(10))
    hi = 0
    if busy:
        for r in range(8):
            A("s_waitcnt lgkmcnt(0)")
            ex = []
            if r == P["flagB"]: ex.append("@wait Hst\n" + flag_store("v7", "s84"))
            if r == P["pollB"]: ex.append(poll_load("PB", "v3"))
            if r == P["chkB"]: ex.append("@wait PB\n" + poll_check("B" + nm, "s61", "v3"))
            nw = min(P["cw"][r], 60 - wi) if r < 7 else 60 - wi
            ex += [wload(i) for i in range(wi, wi + nw)]; wi += nw
            if r >= P["chkB"]:
                ex += [hload(i) for i in range(hi, hi + P["chf"][r])]; hi += P["chf"][r]
            A(weave(cv_mfmas(r), cv_reads(r + 1) if r < 7 else [], ex))
            if r in (0, 3, 5): A(stamp({0: 11, 3: 12, 5: 13}[r]))
        assert hi <= 20
    else:
        D = P["idle_depth"]
        k = 0
        while wi < 60:
            A(wload(wi)); wi += 1; k += 1
            if k == D:
                A("@wait Hst\n" + flag_store("v7", "s84"))
            elif k > D:
                A(f"s_waitcnt vmcnt({D})")
        A(stamp(12))
        A(poll_load("PB", "v3") + "\n@wait PB\n" + poll_check("B" + nm, "s61", "v3"))
        A(stamp(13))
        for i in range(P["idle_pre"]): A(hload(i))
        hi = P["idle_pre"]
    A(stamp(14))
    ev = {}
    fill = []
    if busy:
        fill.append(f"v_lshlrev_b32 v8, 3, v0\ns_add_u32 s85, s70, {Y_OFF}")
        for Ap in range(8):
            d = CV_ACC + 4 * Ap
            fill.append(f"v_cvt_pk_bf16_f32 v{d}, v{d}, v{d+1}\nv_cvt_pk_bf16_f32 v{d+1}, v{d+2}, v{d+3}\n"
                        f"buffer_store_dwordx2 {v(d,2)}, v8, {srd(SWS)}, s85 offen offset:{512*Ap} sc1 ;@Yst")
        ev.setdefault(P["flagC"], []).append(
            f"s_lshl_b32 s84, s5, 9\ns_lshl_b32 s85, s91, 2\ns_add_u32 s84, s84, s85\ns_add_u32 s84, s84, {FC_OFF}\n@wait Yst\n"
            + flag_store("v6", "s84"))
    fill += [hload(i) for i in range(hi, 48)]
    ev.setdefault(P["pollC"], []).append(poll_load("PC", "v4"))
    ydma = ["@wait PC\n" + poll_check("C" + nm, "s60", "v4"),
            "v_lshrrev_b32 v3, 3, v0\nv_lshlrev_b32 v3, 12, v3\nv_and_b32 v4, 7, v0\nv_lshl_add_u32 v3, v4, 4, v3\n"
            f"s_mul_i32 s82, s5, {80*4096}\ns_lshl_b32 s83, s4, 7\ns_add_u32 s82, s82, s83\ns_lshl_b32 s83, s6, 15\ns_add_u32 s82, s82, s83\n"
            f"s_add_u32 s82, s82, {Y_OFF}\ns_lshl_b32 s83, s6, 10\ns_add_u32 m0, s83, {YIMG}\ns_add_u32 s84, s82, {32*4096}\n"
            f"buffer_load_dwordx4 v3, {srd(SWS)}, s82 offen sc1 lds ;@Y\ns_add_u32 m0, s83, {YIMG + 4096}\ns_cmp_ge_u32 s6, 2\n"
            f"buffer_load_dwordx4 v3, {srd(SWS)}, s84 offen sc1 lds ;@Y\ns_cbranch_scc1 L_noy{nm}\n"
            f"s_add_u32 m0, s83, {YIMG + 8192}\ns_add_u32 s84, s82, {64*4096}\n"
            f"buffer_load_dwordx4 v3, {srd(SWS)}, s84 offen sc1 lds ;@opt\nL_noy{nm}:"]
    ev.setdefault(P["chkC"], []).extend(ydma)
    fin = [f"s_mul_i32 s84, s6, 15360\nv_add_u32 v8, s84, v1"]
    for g in range(3):
        for dt in range(5):
            fin.append(f"ds_read_b128 {v(16 + (g*5+dt)*4, 4)}, v8 offset:{RED + g*5120 + dt*1024}")
    for dt in range(5):
        fin.append(f"ds_read_b64_tr_b16 {v(76+2*dt,2)}, v10 offset:{dt*2048}")
    for dt in range(5):
        fin.append(f"ds_read_b64 {v(86+2*dt,2)}, v11 offset:{dt*32}")
    addr = ["v_lshrrev_b32 v10, 2, v0\nv_lshlrev_b32 v10, 7, v10\nv_and_b32 v11, 3, v0\nv_lshl_add_u32 v10, v11, 3, v10",
            f"s_lshl_b32 s84, s6, 5\ns_add_u32 s84, s84, {YIMG}\nv_add_u32 v10, s84, v10",
            "v_and_b32 v208, 15, v0\nv_lshrrev_b32 v209, 2, v208\nv_lshlrev_b32 v209, 1, v209\nv_and_b32 v210, 1, v208",
            "v_or_b32 v209, v209, v210\nv_and_b32 v210, 2, v208\nv_lshl_add_u32 v208, v210, 4, v209",
            "v_mul_u32_u24 v208, 160, v208\nv_lshrrev_b32 v209, 4, v0\nv_lshl_add_u32 v208, v209, 3, v208\nv_add_u32 v11, s87, v208"]
    fill += addr
    cnt = 0
    for g in range(4):
        acc = G2_ACC[g & 1]
        if g >= 1:
            pa = G2_ACC[(g - 1) & 1]
            wr = [f"s_mul_i32 s84, s{76+g-1}, 15\ns_add_u32 s84, s84, {RED + (g-1)*5120}\nv_add_u32 v8, s84, v1"]
            wr += [f"ds_write_b128 v8, {v(pa+4*dt,4)} offset:{dt*1024}" for dt in range(5)]
            fill = fill[:2] + wr + fill[2:]
        for i in range(12):
            if g == 3 and i == P["bar"]:
                A(fill); fill = list(fin)
                A("s_waitcnt vmcnt(0) lgkmcnt(0)\ns_barrier")
                A(stamp(19))
            A(ev.get((g, i), []))
            A(f"@wait H{12*g+i}" + (f" W{5*i+4}" if g == 0 else ""))
            for dt in range(5):
                d = acc + 4 * dt
                c = "0" if i == 0 else v(d, 4)
                A(f"v_mfma_f32_16x16x32_bf16 {v(d,4)}, {a(4*(5*i+dt),4)}, {v(hf_reg(12*g+i),4)}, {c}")
                cnt += 1
                if (cnt % 2 == 0 or (g == 3 and i >= P["bar"])) and fill: A(fill.pop(0))
        A(stamp(15 + g))
    if P["bar"] >= 12:
        A(fill); fill = list(fin)
        A("s_waitcnt vmcnt(0) lgkmcnt(0)\ns_barrier")
        A(stamp(19))
    A(fill)
    A(f"s_or_b32 s84, s4, s6\ns_cmp_lg_u32 s84, 0\ns_cbranch_scc1 L_noec{nm}")
    A(f"s_lshl_b32 s84, s5, 7\ns_add_u32 s84, s84, {EC_OFF}\n" + flag_store("v6", "s84") + f"\nL_noec{nm}:")
    A(f"s_or_b32 s84, s5, s6\ns_cmp_lg_u32 s84, 0\ns_cbranch_scc1 L_noer{nm}")
    A(f"s_lshl_b32 s84, s4, 7\ns_add_u32 s84, s84, {ER_OFF}\n" + flag_store("v7", "s84") + f"\nL_noer{nm}:")
    A("s_waitcnt lgkmcnt(0)")
    acc = G2_ACC[1]
    for dt in range(5):
        for hf in range(2):
            b = 16 + dt * 4 + 2 * hf
            o = acc + dt * 4 + 2 * hf
            A(f"v_pk_add_f32 {v(b,2)}, {v(b,2)}, {v(b+20,2)}")
            A(f"v_pk_add_f32 {v(o,2)}, {v(o,2)}, {v(b+40,2)}")
            A(unpack(100, 76 + 2 * dt + hf)); A(unpack(102, 86 + 2 * dt + hf))
            A(f"v_pk_add_f32 {v(b,2)}, {v(b,2)}, {v(o,2)}")
            A("v_pk_mul_f32 v[100:101], v[100:101], v[102:103]")
            A(f"v_pk_mul_f32 {v(b,2)}, {v(b,2)}, v[14:15]")
            A(f"v_pk_fma_f32 {v(b,2)}, v[100:101], v[12:13], {v(b,2)}")
            A(f"v_cvt_pk_bf16_f32 v{104+2*dt+hf}, v{b}, v{b+1}")
        A(f"ds_write_b64 v11, {v(104+2*dt,2)} offset:{dt*32}")
    A("v_add_u32 v8, s87, v1\ns_waitcnt lgkmcnt(0)")
    A(stamp(20))
    for i, ro in enumerate((0, 4, 32, 36)):
        A(f"ds_read_b128 {v(116+4*i,4)}, v8 offset:{ro*160}")
    A("s_mov_b32 exec_lo, -1\ns_mov_b32 exec_hi, 0xff")
    for i, ro in enumerate((0, 4, 32, 36)):
        A(f"s_waitcnt lgkmcnt({3-i})\ns_mov_b32 s82, {ro*1280}")
        A(f"buffer_store_dwordx4 {v(116+4*i,4)}, v2, {srd(SOUT)}, s82 offen")
    if STAMPS:
        A("s_mov_b64 exec, -1\ns_waitcnt vmcnt(0)")
        A(stamp(21))
        A("s_memrealtime s[92:93]\ns_waitcnt lgkmcnt(0)\nv_writelane_b32 v9, s92, 31")
        A("s_getreg_b32 s92, hwreg(HW_REG_XCC_ID)\nv_writelane_b32 v9, s92, 29")
        A(f"s_lshl_b32 s92, s2, 2\ns_add_u32 s92, s92, s6\ns_lshl_b32 s92, s92, 7\ns_add_u32 s92, s92, {STAMP_OFF}")
        A(f"v_lshlrev_b32 v2, 2, v0\ns_mov_b64 exec, 0xffffffff\nbuffer_store_dword v9, v2, {srd(SWS)}, s92 offen")
    if P["echo"] >= 0:
        A("s_waitcnt vmcnt(0)")
        A(stamp(21))
        A(f"s_memtime s[92:93]\ns_waitcnt lgkmcnt(0)\ns_sub_u32 s100, s100, s101\ns_mov_b32 s101, s92\nL_echo{nm}:\ns_memtime s[92:93]\ns_waitcnt lgkmcnt(0)\n"
          f"s_sub_u32 s92, s92, s101\ns_cmp_lt_u32 s92, s100\ns_cbranch_scc1 L_echo{nm}")
    A("s_endpgm")


def build():
    global SPINS
    SPINS = []
    pre = Out(); prefix(pre)
    if P["pst"]:
        nl = []; k = 1; skip = 0
        for i, x in enumerate(pre.l):
            if x.startswith("s_memtime s[92:93]") and pre.l[i+1].startswith("s_waitcnt"): skip = 3
            if skip: skip -= 1; continue
            nl.append(x)
            if (x.startswith("buffer_") or x.startswith("s_cselect_b32 s13")) and k < 29 and "opt" not in x:
                nl += stamp(k).split("\n"); k += 1
        pre.l = nl
    global INSUF
    INSUF = True
    sb = Out(); suffix(sb, True)
    si = Out(); suffix(si, False)
    rb_ = resolve_waits(pre.l + ["@@"] + sb.l)
    ri_ = resolve_waits(pre.l + ["@@"] + si.l)
    kb, ki = rb_.index("@@"), ri_.index("@@")
    assert rb_[:kb] == ri_[:ki]
    A = Asm()
    for x in rb_[:kb] + rb_[kb + 1:] + ["L_idle:", "s_nop 7", "s_nop 3"] + ri_[ki + 1:]: A(x.split(";@")[0])
    for s in SPINS: A(s)
    A("L_end:\ns_endpgm")
    kn = NAME + "_kernel"
    txt = header([f"; @launch grid=(256,1,1) block=(256,1,1) lds={LDS_TOTAL}"])
    txt += '.amdgcn_target "amdgcn-amd-amdhsa--gfx950"\n.text\n'
    txt += kernel_text(kn, A.text())
    txt += '.section .rodata,"a"\n' + desc(kn, 512, 256)
    return txt


if __name__ == "__main__":
    out = sys.argv[1] if len(sys.argv) > 1 else f"cdna_kernels/{NAME}.s"
    for kv in sys.argv[2:]:
        if kv == "stamps":
            STAMPS = True
        else:
            k_, v_ = kv.split("=", 1)
            P[k_] = eval(v_)
    open(out, "w").write(build())
```

```python
import sys, os
sys.path.insert(0, os.path.dirname(__file__))
from asmlib import Asm, resolve_waits
from gen1 import header, desc, kernel_text, NAME

U_OFF = 0
W2F_OFF = 5242880
HF_OFF = 7208960
Y_OFF = 13500416
FLAG_OFF = 16138240
EC_OFF, ER_OFF = FLAG_OFF, FLAG_OFF + 1024
FA_OFF, FB_OFF, FC_OFF = FLAG_OFF + 8192, FLAG_OFF + 12288, FLAG_OFF + 16384
WS_SIZE = FLAG_OFF + 24576
STAMP_OFF = WS_SIZE
TAGC = 0x9E3779B9

SX, SK_, SV, SSK, SH, SW1, SW2, SGW, SOUT, SWS = 8, 12, 16, 20, 24, 28, 32, 36, 40, 44
CVL = 98304
CH_BYTES = 17536
GWL = CVL + 3 * CH_BYTES
LDS_TOTAL = GWL + 2560
RED, YIMG, QIMG = 0, 61440, 71680

P = dict(
    rot1=1, rot2=0, rotk=0, pst=0, osc='', echo=-1,
    w9=10,
    cw=[6, 8, 8, 8, 8, 6, 6, 0],
    chf=[0, 0, 0, 0, 0, 4, 6, 10],
    flagB=2, pollB=4, chkB=5,
    flagC=(1, 2), pollC=(2, 4), chkC=(3, 0), bar=12,
    idle_depth=12, idle_pre=16, lsc=' sc1',
)
STAMPS = False
INSUF = False


def srd(b): return f"s[{b}:{b+3}]"
def v(b, n=1): return f"v{b}" if n == 1 else f"v[{b}:{b+n-1}]"
def a(b, n=1): return f"a{b}" if n == 1 else f"a[{b}:{b+n-1}]"


class Out:
    def __init__(self):
        self.l = []

    def __call__(self, s):
        if isinstance(s, (list, tuple)):
            for x in s: self(x)
            return
        for line in s.split("\n"):
            line = line.strip()
            if line: self.l.append(line)


def stamp(i, force=False):
    if P["echo"] == i: return "s_memtime s[92:93]\ns_waitcnt lgkmcnt(0)\ns_mov_b32 s100, s92"
    if not STAMPS: return ""
    if P["pst"] and INSUF: return ""
    return f"s_memtime s[92:93]\ns_waitcnt lgkmcnt(0)\nv_writelane_b32 v9, s92, {i}"


def unpack(d, s):
    return f"v_lshlrev_b32 v{d}, 16, v{s}\nv_and_b32 v{d+1}, 0xffff0000, v{s}"


def spread(main, groups, lo=0, hi=None):
    hi = len(main) if hi is None else hi
    n = len(groups)
    pos = {}
    for k in range(n):
        pos.setdefault(lo + (k * (hi - lo)) // n, []).append(groups[k])
    out = []
    for i, m in enumerate(main):
        out.append(m)
        out.extend(pos.get(i, []))
    return out


SPINS = []


def poll_check(name, tagreg, vaddr):
    SPINS.append(f"""L_spin_{name}:
s_mov_b32 s90, 0x40000
L_spinl_{name}:
buffer_load_dword v5, {vaddr}, {srd(SWS)}, 0 offen sc1
s_waitcnt vmcnt(0)
v_cmp_ne_u32 vcc, {tagreg}, v5
s_cbranch_vccz L_ret_{name}
s_sub_u32 s90, s90, 1
s_cmp_lg_u32 s90, 0
s_cbranch_scc1 L_spinl_{name}
s_branch L_ret_{name}""")
    return f"v_cmp_ne_u32 vcc, {tagreg}, v5\ns_cbranch_vccnz L_spin_{name}\nL_ret_{name}:"


def poll_load(tag, vaddr):
    return f"buffer_load_dword v5, {vaddr}, {srd(SWS)}, 0 offen sc1 ;@{tag}"


def flag_store(vtag, soff):
    return f"s_mov_b64 exec, 1\nbuffer_store_dword {vtag}, off, {srd(SWS)}, {soff} sc1\ns_mov_b64 exec, -1"


G1_ACC = 16
G1_WF = (64, 88)
G1_XF = (112, 120)
G1_GW = (128, 132)
G1_WV = 224
G1_XV = 230
G1_RA = 232
G1_GA = 252
ZACC = 12
CV_ACC = 96
CV_U = (128, 160)
CV_H = (192, 224)
G2_ACC = (216, 236)


def hf_reg(slot):
    return 16 + 4 * slot


def g1_dma(stage):
    buf = stage % 3
    out = []
    for j in range(2):
        out.append(f"s_add_u32 m0, s67, {buf*32768 + j*1024}\ns_nop 0\n"
                   f"buffer_load_dwordx4 v{G1_XV+j}, {srd(SX)}, s64 offen lds ;@S{stage}")
    for j in range(6):
        out.append(f"s_add_u32 m0, s66, {buf*32768 + j*1024}\ns_nop 0\n"
                   f"buffer_load_dwordx4 v{G1_WV+j}, {srd(SW1)}, s65 offen lds ;@S{stage}")
    out[-1] += ("\ns_add_u32 s64, s64, 128\ns_add_u32 s65, s65, 196608\ns_cmp_eq_u32 s64, 1280\n"
                "s_cselect_b32 s64, 0, s64\ns_cselect_b32 s65, 0, s65")
    return out


def g1_reads(stage, kk):
    buf = stage % 3
    ra = G1_RA + 10 * (buf >> 1)
    bo = (buf & 1) * 32768
    out = []
    for sl in range(2):
        out.append(f"ds_read_b128 {v(G1_XF[kk] + 4*sl, 4)}, v{ra+6+2*kk+sl} offset:{bo}")
    for t in range(6):
        for h in range(2):
            out.append(f"ds_read_b64_tr_b16 {v(G1_WF[kk] + 4*t + 2*h, 2)}, v{ra+t} offset:{bo + kk*12288 + h*1536}")
    out.append(f"ds_read_b128 {v(G1_GW[kk], 4)}, v{G1_GA} offset:{stage*128 + kk*64}")
    return out


def g1_mfmas(kk, first=False):
    out = []
    for t in range(6):
        for sl in range(2):
            d = G1_ACC + (sl * 6 + t) * 4
            c = "0" if first else v(d, 4)
            out.append(f"v_mfma_f32_16x16x32_bf16 {v(d,4)}, {v(G1_WF[kk]+4*t,4)}, {v(G1_XF[kk]+4*sl,4)}, {c}")
    c = "0" if first else v(ZACC, 4)
    out.append(f"v_mfma_f32_16x16x32_bf16 {v(ZACC,4)}, {v(G1_GW[kk],4)}, {v(G1_XF[kk],4)}, {c}")
    return out


def mix(mf, reads, extras):
    out = []
    ri = 0
    n = len(extras)
    pos = {}
    for k in range(n):
        pos.setdefault((k * len(mf)) // n, []).append(extras[k])
    for i, m in enumerate(mf):
        out.extend(pos.get(i, []))
        out.append(m)
        for _ in range(2):
            if ri < len(reads):
                out.append(reads[ri]); ri += 1
    out.extend(reads[ri:])
    return out


def g1_stage(A, t, ea, eb, pre=None, waits=""):
    A(f"@wait S{t} {waits}\ns_barrier")
    if pre: A(pre)
    if t == 0:
        A(g1_reads(0, 0)); A(ea)
    else:
        A(mix(g1_mfmas(1), g1_reads(t, 0), ea))
    A("s_waitcnt lgkmcnt(0)")
    A(mix(g1_mfmas(0, first=(t == 0)), g1_reads(t, 1), eb))
    A("s_waitcnt lgkmcnt(0)")


def wload(n):
    i, dt = divmod(n, 5)
    if dt < 4:
        return f"buffer_load_dwordx4 {a(4*n,4)}, v1, {srd(SWS)}, s71 offen offset:{dt*1024}{P['lsc']} ;@W{n}"
    return (f"s_add_u32 s74, s71, 4096\ns_add_u32 s71, s71, 5120\n"
            f"buffer_load_dwordx4 {a(4*n,4)}, v1, {srd(SWS)}, s74 offen{P['lsc']} ;@W{n}\n"
            "s_cmp_eq_u32 s71, s73\ns_cselect_b32 s71, s72, s71")


def hload(slot):
    g, i = divmod(slot, 12)
    return (f"s_add_u32 s75, s{48+i}, s{76+g}\n"
            f"buffer_load_dwordx4 {v(hf_reg(slot),4)}, v1, {srd(SWS)}, s75 offen{P['lsc']} ;@H{slot}")


def prefix(A):
    KIMG, VIMG, W2IMG = CVL, CVL + 11136, CVL + 22272
    A("s_cmp_ge_u32 s2, 256\ns_cbranch_scc1 L_end")
    for b, o in ((SK_, 8), (SV, 16), (SWS, 96), (SW2, 64), (SSK, 24), (SGW, 72), (SX, 0), (SW1, 56), (SH, 32), (88, 40),
                 (SOUT, 80)):
        A(f"s_load_dwordx2 s[{b}:{b+1}], s[0:1], {o}")
    if P["echo"] >= 0: A("s_memtime s[98:99]")
    if STAMPS:
        A("s_memrealtime s[94:95]\ns_memtime s[92:93]\nv_mov_b32 v9, 0")
    A("v_lshrrev_b32 v1, 6, v0\nv_and_b32 v0, 63, v0\nv_readfirstlane_b32 s6, v1\nv_lshlrev_b32 v1, 4, v0")
    A("s_lshr_b32 s3, s2, 3\ns_and_b32 s7, s2, 7")
    A("s_lshr_b32 s4, s7, 1\ns_lshl_b32 s4, s4, 3\ns_lshr_b32 s5, s3, 2\ns_add_u32 s4, s4, s5")
    A("s_and_b32 s5, s7, 1\ns_lshl_b32 s5, s5, 2\ns_and_b32 s3, s3, 3\ns_add_u32 s5, s5, s3")
    for b, n in ((SX, 2621440), (SK_, 2621440), (SSK, 5120), (SH, 2621440), (SW1, 1966080),
                 (SW2, 1966080), (SGW, 1280), (SOUT, 2621440), (SWS, WS_SIZE + (131072 if STAMPS else 0))):
        A(f"s_mov_b32 s{b+2}, {n}\ns_mov_b32 s{b+3}, 0x00020000")
    A("v_mul_u32_u24 v16, 205, v0\nv_lshrrev_b32 v16, 11, v16\nv_mul_u32_u24 v17, 10, v16\nv_sub_u32 v17, v0, v17")
    A("v_mul_u32_u24 v18, 1280, v16\nv_lshl_add_u32 v18, v17, 4, v18")
    A("s_mul_i32 s7, s4, 81920\ns_mul_i32 s3, s5, 160\ns_add_u32 s7, s7, s3")
    A("s_and_b32 s74, s6, 1\ns_mul_i32 s75, s74, 40960\ns_add_u32 s75, s75, s7")
    A("v_add_u32 v19, s75, v18\nv_subrev_u32 v20, 5120, v19")
    A(f"s_lshr_b32 s80, s6, 1\ns_mul_i32 s80, s80, 11136\ns_mul_i32 s75, s74, 5248\ns_add_u32 s80, s80, s75\ns_add_u32 s80, s80, {KIMG}")
    A(f"s_mul_i32 s81, s74, 640\ns_mul_i32 s82, s6, 640\ns_add_u32 s82, s82, {GWL}")
    for t in range(3):
        A(f"s_lshl_b32 s83, s6, 6\ns_add_u32 s83, s83, {256 * t}")
        A(f"v_add_u32 v26, s83, v0\nv_mul_u32_u24 v27, 6554, v26\nv_lshrrev_b32 v27, 16, v27")
        A(f"v_mul_u32_u24 v28, 10, v27\nv_sub_u32 v28, v26, v28\nv_mul_u32_u24 v27, 1280, v27\nv_lshl_add_u32 v{21+t}, v28, 4, v27")
    A(f"s_sub_u32 s83, s7, 655360\ns_lshl_b32 s84, s6, 10\ns_add_u32 s84, s84, {W2IMG}")
    A("v_lshrrev_b32 v24, 3, v0\nv_lshlrev_b32 v24, 5, v24")
    A("s_mul_i32 s85, s5, 640\ns_mul_i32 s86, s6, 160\ns_add_u32 s85, s85, s86")
    A(f"s_lshl_b32 s86, s5, 7\ns_add_u32 s86, s86, {EC_OFF}\ns_lshl_b32 s87, s4, 7\ns_add_u32 s87, s87, {ER_OFF}")
    A("s_mul_i32 s74, s6, 49152\ns_mul_i32 s75, s5, 384\ns_add_u32 s74, s74, s75\ns_add_u32 s75, s74, 24576")
    for j in range(3):
        A(f"v_add_u32 v26, {64*j}, v0\nv_mul_u32_u24 v27, 2731, v26\nv_lshrrev_b32 v27, 16, v27")
        A("v_mul_u32_u24 v28, 24, v27\nv_sub_u32 v28, v26, v28")
        A("v_and_b32 v29, 2, v27\nv_xor_b32 v28, v28, v29\nv_mul_u32_u24 v27, 3072, v27")
        A(f"v_lshl_add_u32 v29, v28, 4, v27\nv_add_u32 v{G1_WV+j}, s74, v29")
        A(f"v_xor_b32 v28, 4, v28\nv_lshl_add_u32 v29, v28, 4, v27\nv_add_u32 v{G1_WV+3+j}, s75, v29")
    A("v_lshrrev_b32 v26, 3, v0\nv_and_b32 v27, 7, v0\nv_xor_b32 v27, v27, v26")
    A("v_lshrrev_b32 v28, 2, v26\nv_lshlrev_b32 v28, 1, v28\nv_and_b32 v29, 1, v26\nv_or_b32 v28, v28, v29")
    A("v_and_b32 v29, 2, v26\nv_lshl_add_u32 v28, v29, 4, v28")
    A("v_mul_u32_u24 v28, 1280, v28\nv_lshl_add_u32 v28, v27, 4, v28")
    A("s_mul_i32 s74, s4, 81920\ns_mul_i32 s75, s6, 10240\ns_add_u32 s74, s74, s75")
    A(f"v_add_u32 v{G1_XV}, s74, v28\nv_add_u32 v{G1_XV+1}, 5120, v{G1_XV}")
    A("s_mul_i32 s66, s6, 6144\ns_lshl_b32 s67, s6, 11\ns_add_u32 s67, s67, 24576")
    if P["rot1"]:
        A("s_and_b32 s74, s4, 7\ns_and_b32 s75, s5, 3\ns_mul_i32 s75, s75, 3\ns_add_u32 s74, s74, s75")
        A("s_sub_u32 s75, s74, 10\ns_cmp_ge_u32 s74, 10\ns_cselect_b32 s74, s75, s74")
        A("s_lshl_b32 s64, s74, 7\ns_mul_i32 s65, s74, 196608")
    else:
        A("s_mov_b32 s64, 0\ns_mov_b32 s65, 0")
    A(f"v_lshrrev_b32 v26, 4, v0\ns_add_u32 s74, s64, {GWL}\nv_lshlrev_b32 v26, 4, v26\nv_add_u32 v{G1_GA}, s74, v26")
    A("s_lshl_b32 s91, s6, 5\ns_add_u32 s91, s91, s4\ns_cmp_lt_u32 s91, 80\ns_cselect_b64 s[62:63], -1, 0\ns_cselect_b32 s91, s91, 0")
    A("s_mul_i32 s70, s5, 80\ns_add_u32 s70, s70, s91\ns_lshl_b32 s96, s70, 1\ns_and_b32 s96, s96, -4\ns_lshl_b32 s70, s70, 12")
    A("s_cmp_lt_u32 s6, 2")
    A("s_waitcnt lgkmcnt(0)")
    if P["echo"] >= 0: A("s_mov_b32 s101, s98\ns_mov_b32 s100, s98")
    if STAMPS:
        A("v_writelane_b32 v9, s92, 0\nv_writelane_b32 v9, s94, 30")
    A(stamp(22))
    A(f"s_cselect_b32 s{SK_}, s{SK_}, s{SV}\ns_cselect_b32 s{SK_+1}, s{SK_+1}, s{SV+1}")
    A("s_mov_b32 exec_lo, -1\ns_mov_b32 exec_hi, 0xff")
    for i in range(9):
        A(f"s_add_u32 m0, s80, {(i >> 1) * 1312 + (i & 1) * 640}")
        if i == 0:
            A(f"s_nop 0\nbuffer_load_dwordx4 v20, {srd(SK_)}, 0 offen lds ;@P1")
        else:
            A(f"s_mov_b32 s74, {(i - 1) * 5120}\nbuffer_load_dwordx4 v19, {srd(SK_)}, s74 offen lds ;@P1")
    A(f"s_mov_b32 m0, s82\ns_nop 0\nbuffer_load_dwordx4 v1, {srd(SGW)}, s81 offen lds ;@P1")
    A("s_mov_b64 exec, -1")
    A(f"buffer_load_dword v6, off, {srd(SWS)}, s86 sc1 ;@P1\nbuffer_load_dword v7, off, {srd(SWS)}, s87 sc1 ;@P1")
    A("s_cmp_lt_u32 s4, 8\ns_cbranch_scc1 L_now2a")
    for t in range(3):
        if t == 2:
            A("s_cmp_ge_u32 s6, 2\ns_cbranch_scc1 L_now2a")
        A(f"s_add_u32 m0, s84, {4096*t}\ns_nop 0")
        A(f"buffer_load_dwordx4 v{21+t}, {srd(SW2)}, s83 offen lds ;@opt")
    A("L_now2a:")
    A(f"buffer_load_dwordx4 v[136:139], v24, {srd(SSK)}, s85 offen ;@P1")
    A(f"buffer_load_dwordx4 v[140:143], v24, {srd(SSK)}, s85 offen offset:16 ;@P1")
    A(stamp(23))
    A(g1_dma(0))
    A(stamp(24))
    A(f"s_add_u32 s94, s{SH}, s70\ns_addc_u32 s95, s{SH+1}, 0\ns_load_dwordx2 s[94:95], s[94:95], 0\ns_load_dword s96, s[88:89], s96")
    A(stamp(1))
    A("v_lshrrev_b32 v26, 4, v0\nv_lshrrev_b32 v27, 2, v0\nv_and_b32 v27, 3, v27")
    A("v_lshl_add_u32 v28, v26, 3, v27\nv_mul_u32_u24 v28, 384, v28\nv_and_b32 v29, 3, v0\nv_lshl_add_u32 v28, v29, 3, v28")
    A("v_lshrrev_b32 v29, 1, v27\nv_and_b32 v30, 1, v26\nv_lshl_add_u32 v29, v30, 1, v29")
    A("s_and_b32 s74, s6, 1\ns_mul_i32 s74, s74, 6")
    for t in range(6):
        A(f"s_add_u32 s75, s74, {t}\nv_xor_b32 v30, s75, v29\nv_lshl_add_u32 v{G1_RA+t}, v30, 5, v28")
    A("v_and_b32 v27, 15, v0\nv_and_b32 v28, 7, v0\nv_xor_b32 v28, v28, v26\nv_lshlrev_b32 v27, 7, v27")
    A("s_lshl_b32 s74, s6, 11\ns_add_u32 s74, s74, 24576")
    A(f"v_add_u32 v27, s74, v27\nv_lshl_add_u32 v{G1_RA+6}, v28, 4, v27\nv_xor_b32 v{G1_RA+7}, 2048, v{G1_RA+6}")
    A(f"v_xor_b32 v{G1_RA+8}, 64, v{G1_RA+6}\nv_xor_b32 v{G1_RA+9}, 64, v{G1_RA+7}")
    for i in range(10):
        A(f"v_add_u32 v{G1_RA+10+i}, 65536, v{G1_RA+i}")
    if P["rotk"]:
        A("s_add_u32 s68, s6, s5\ns_and_b32 s68, s68, 3")
    else:
        A("s_mov_b32 s68, s6")
    if P["rot2"]:
        A("s_and_b32 s74, s4, 7\ns_mul_i32 s74, s74, 3\ns_lshr_b32 s74, s74, 1")
    else:
        A("s_mov_b32 s74, 0")
    A(f"s_mul_i32 s72, s5, 240\ns_mul_i32 s75, s68, 60\ns_add_u32 s72, s72, s75\ns_lshl_b32 s72, s72, 10\ns_add_u32 s72, s72, {W2F_OFF}")
    A("s_add_u32 s73, s72, 61440\ns_mul_i32 s75, s74, 5120\ns_add_u32 s71, s72, s75")
    A(f"s_mul_i32 s75, s4, 48\ns_mul_i32 s76, s68, 12\ns_add_u32 s75, s75, s76\ns_lshl_b32 s75, s75, 12\ns_add_u32 s75, s75, {HF_OFF}")
    A("s_add_u32 s76, s75, 49152\ns_lshl_b32 s74, s74, 12\ns_add_u32 s48, s75, s74")
    for i in range(1, 12):
        A(f"s_add_u32 s{48+i}, s{47+i}, 4096\ns_cmp_eq_u32 s{48+i}, s76\ns_cselect_b32 s{48+i}, s75, s{48+i}")
    A("s_mul_i32 s74, s91, 205\ns_lshr_b32 s74, s74, 12\ns_lshl_b32 s74, s74, 7")
    A("v_lshlrev_b32 v2, 2, v0\nv_add_u32 v2, s74, v2")
    A("v_lshrrev_b32 v26, 3, v0\nv_and_b32 v26, 3, v26\nv_and_b32 v27, 7, v0\nv_min_u32 v28, 5, v27")
    A("s_mul_i32 s74, s68, 24\ns_add_u32 s74, s74, 32\nv_lshlrev_b32 v28, 2, v28\nv_lshl_add_u32 v28, v26, 7, v28\nv_add_u32 v28, s74, v28")
    A(f"v_cmp_gt_u32 vcc, 32, v0\ns_lshl_b32 s74, s5, 9\ns_add_u32 s74, s74, {FA_OFF}\nv_cndmask_b32 v2, v28, v2, vcc\nv_add_u32 v2, s74, v2")
    A(f"s_lshl_b32 s74, s4, 7\ns_lshl_b32 s75, s68, 5\ns_add_u32 s74, s74, s75\ns_add_u32 s74, s74, {FB_OFF}")
    A("v_lshlrev_b32 v27, 2, v27\nv_add_u32 v3, s74, v27")
    A("s_cmp_lt_u32 s6, 2\ns_cselect_b32 s74, 2, 1\nv_min_u32 v26, s74, v26\nv_lshl_add_u32 v4, v26, 7, v27")
    A(f"s_lshl_b32 s74, s5, 9\ns_lshl_b32 s75, s6, 5\ns_add_u32 s74, s74, s75\ns_add_u32 s74, s74, {FC_OFF}\nv_add_u32 v4, s74, v4")
    A(f"s_mul_i32 s69, s6, {CH_BYTES}\ns_add_u32 s69, s69, {CVL}")
    A("v_and_b32 v26, 1, v0\nv_mul_u32_u24 v26, 4576, v26\nv_and_b32 v27, 14, v0\nv_lshl_add_u32 v26, v27, 5, v26")
    A("v_lshrrev_b32 v27, 4, v0\nv_lshlrev_b32 v28, 4, v27\nv_sub_u32 v26, v26, v28\ns_add_u32 s74, s69, 48\nv_add_u32 v10, s74, v26")
    A("v_and_b32 v26, 15, v0\nv_lshlrev_b32 v26, 2, v26\nv_add_u32 v26, v26, v28")
    A("v_and_b32 v27, 1, v0\nv_mul_u32_u24 v27, 4228, v27\nv_sub_u32 v26, v26, v27")
    A(f"s_add_u32 s74, s69, {9152 + 4224}\nv_add_u32 v11, s74, v26")
    A("s_mul_i32 s74, s4, 48\ns_mul_i32 s75, s5, 6\ns_add_u32 s74, s74, s75\ns_and_b32 s75, s6, 1\ns_mul_i32 s75, s75, 3\ns_add_u32 s74, s74, s75")
    A(f"s_lshl_b32 s74, s74, 2\ns_add_u32 s74, s74, s6\ns_lshl_b32 s97, s74, 10\ns_add_u32 s97, s97, {HF_OFF}\ns_xor_b32 s98, s97, 1024")
    assert HF_OFF % 4096 == 0
    A("v_and_b32 v58, 7, v0\nv_mul_u32_u24 v58, 1312, v58\nv_lshrrev_b32 v26, 3, v0\nv_lshl_add_u32 v58, v26, 3, v58")
    A(f"s_mul_i32 s74, s6, 40\ns_add_u32 s74, s74, {KIMG}\nv_add_u32 v58, s74, v58")
    A("v_lshrrev_b32 v59, 2, v0\nv_mul_u32_u24 v59, 160, v59\nv_and_b32 v27, 3, v0\nv_lshl_add_u32 v59, v27, 3, v59")
    for t in range(3):
        A(f"s_add_u32 s74, s6, {4*t}\ns_lshl_b32 s75, s74, 5\ns_cmp_ge_u32 s74, 5\ns_cselect_b32 s74, 4960, 0\ns_add_u32 s75, s75, s74")
        A(f"s_add_u32 s75, s75, {W2IMG}\nv_add_u32 v{193+t}, s75, v59")
    A("v_lshlrev_b32 v192, 15, v26\nv_and_b32 v27, 7, v0\nv_lshl_add_u32 v192, v27, 4, v192")
    A(f"s_mul_i32 s83, s5, {80*8192}\ns_mul_i32 s74, s6, {20*8192}\ns_add_u32 s83, s83, s74\ns_lshl_b32 s74, s4, 7\ns_add_u32 s83, s83, s74")
    A(f"s_mul_i32 s84, s5, 240\ns_mul_i32 s74, s4, 10\ns_add_u32 s84, s84, s74\ns_add_u32 s84, s84, s6\ns_lshl_b32 s84, s84, 10\ns_add_u32 s84, s84, {W2F_OFF - 80*1024}")
    A(f"s_lshl_b32 s85, s5, 9\ns_lshl_b32 s74, s6, 7\ns_add_u32 s85, s85, s74\ns_lshl_b32 s74, s4, 2\ns_add_u32 s85, s85, s74\ns_add_u32 s85, s85, {FA_OFF}")
    A(stamp(25))
    if STAMPS: A("s_waitcnt vmcnt(16)\n" + stamp(26) + "\ns_waitcnt vmcnt(12)\n" + stamp(27) + "\n@wait P1\n" + stamp(28))
    A("@wait P1\ns_barrier")
    A(stamp(2))
    ko = lambda i: (i >> 3) * 1312 + (i & 7) * 160
    for i in range(12):
        A(f"ds_read_b64 v[{16+2*i}:{17+2*i}], v58 offset:{ko(i)}")
    for i in range(3, 12):
        A(f"ds_read_b64 v[{40+2*(i-3)}:{41+2*(i-3)}], v58 offset:{11136 + ko(i)}")
    for t in range(3):
        A(f"ds_read_b64_tr_b16 v[{180+4*t}:{181+4*t}], v{193+t}")
        A(f"ds_read_b64_tr_b16 v[{182+4*t}:{183+4*t}], v{193+t} offset:2560")
    A(f"v_add_u32 v6, {TAGC:#x}, v6\nv_add_u32 v7, {TAGC:#x}, v7")
    for c in range(4):
        A(f"v_lshlrev_b32 v{60+c}, 16, v{136+2*c}\nv_and_b32 v{64+c}, 0xffff0000, v{136+2*c}")
        A(f"v_lshlrev_b32 v{68+c}, 16, v{137+2*c}\nv_and_b32 v{72+c}, 0xffff0000, v{137+2*c}")
    A("v_readfirstlane_b32 s60, v6\nv_readfirstlane_b32 s61, v7")
    A("s_waitcnt lgkmcnt(0)")
    A("s_cmp_lt_u32 s4, 8\ns_cbranch_scc1 L_now2c")
    for t in range(3):
        if t == 2:
            A("s_cmp_ge_u32 s6, 2\ns_cbranch_scc1 L_now2c")
        A(f"buffer_store_dwordx4 v[{180+4*t}:{183+4*t}], v1, {srd(SWS)}, s84 offen sc1 ;@opt\ns_add_u32 s84, s84, 4096")
    A("L_now2c:")
    B = Out()
    for i in range(12):
        B(unpack(76 + 4 * i, 16 + 2 * i)); B(unpack(78 + 4 * i, 17 + 2 * i))
    for ip in range(9):
        for hf in range(2):
            o = 144 + 4 * ip + 2 * hf
            for j in range(4):
                kr = 76 + 4 * (ip + 3 - j) + 2 * hf
                tr = 60 + 4 * j + 2 * hf
                if j == 0:
                    B(f"v_pk_mul_f32 v[{o}:{o+1}], v[{kr}:{kr+1}], v[{tr}:{tr+1}]")
                else:
                    B(f"v_pk_fma_f32 v[{o}:{o+1}], v[{kr}:{kr+1}], v[{tr}:{tr+1}], v[{o}:{o+1}]")
            B(unpack(58, 40 + 2 * ip + hf))
            B(f"v_pk_mul_f32 v[{o}:{o+1}], v[{o}:{o+1}], v[58:59]")
    A(spread(B.l, g1_dma(1) + g1_dma(2)))
    A(stamp(3))
    A("s_mov_b32 exec_lo, -1\ns_mov_b32 exec_hi, 0xff")
    for c in range(4):
        for rho in range(2):
            d = 16 + 4 * (2 * c + rho)
            for q in range(4):
                A(f"v_cvt_pk_bf16_f32 v{d+q}, v{144 + 4*(7+rho-2*q) + c}, v{144 + 4*(6+rho-2*q) + c}")
            A(f"buffer_store_dwordx4 v[{d}:{d+3}], v192, {srd(SWS)}, s83 offen sc1 ;@Ust\ns_add_u32 s83, s83, 4096")
    A("s_mov_b64 exec, -1")
    A(stamp(4))
    pads = [
        "v_mov_b32 v144, 0\nv_mov_b32 v145, 0\nv_mov_b32 v146, 0\nv_mov_b32 v147, 0",
        "v_lshrrev_b32 v148, 5, v0\nv_mul_u32_u24 v148, 4576, v148\nv_and_b32 v149, 31, v0",
        "v_lshl_add_u32 v148, v149, 4, v148\nv_add_u32 v148, s69, v148\ns_and_b32 exec_lo, s62, 0x0fffffff\ns_and_b32 exec_hi, s62, 0x0fffffff\n"
        "ds_write_b128 v148, v[144:147]\ns_mov_b64 exec, -1",
        "s_bitcmp1_b32 s70, 12\ns_cselect_b32 s80, 0, 16\ns_lshl_b32 s96, s96, s80\ns_and_b32 s96, s96, 0xffff0000",
        "s_lshl_b32 s80, s94, 16\nv_mov_b32 v148, s80\nv_add_f32 v148, s96, v148\ns_and_b32 s80, s94, 0xffff0000\nv_mov_b32 v149, s80",
        "v_cvt_pk_bf16_f32 v148, v148, v149\nv_mov_b32 v150, 0\nv_readfirstlane_b32 s80, v148",
        "v_lshrrev_b32 v148, 4, v0\nv_mul_u32_u24 v148, 4224, v148\nv_and_b32 v149, 15, v0\nv_lshl_add_u32 v148, v149, 2, v148",
        "v_writelane_b32 v150, s80, 14\nv_writelane_b32 v150, s95, 15\nv_writelane_b32 v150, s80, 31",
        "s_add_u32 s80, s69, 9152\nv_add_u32 v148, s80, v148\ns_mov_b32 exec_lo, s62\ns_mov_b32 exec_hi, 0\n"
        "ds_write_b32 v148, v150\ns_mov_b64 exec, -1",
    ]
    for t in range(8):
        d = g1_dma(t + 2) if t >= 1 else []
        ea, eb = d[:4], d[4:]
        pre = None
        if t == 0: eb = pads
        if t == 3: pre = flag_store("v6", "s85")
        if t == 6: eb = eb + [poll_load("PA", "v2")]
        g1_stage(A, t, ea, eb, pre, waits=("Ust" if t == 3 else ""))
        if t in (0, 1, 3, 7): A(stamp({0: 5, 1: 6, 3: 7, 7: 8}[t]))
    A("s_cmp_eq_u32 s62, 0\ns_cbranch_scc1 L_idle")


def silu_blocks():
    out = []
    for tp in range(3):
        for sl in range(2):
            d = G1_ACC + (sl * 6 + 2 * tp) * 4
            T = 64 + ((tp * 2 + sl) & 1) * 16
            B = Out()
            for q in range(4):
                B(f"v_pk_mul_f32 {v(T+2*q,2)}, {v(d+2*q,2)}, s[80:81]")
            for q in range(8):
                B(f"v_exp_f32 v{T+q}, v{T+q}")
            for q in range(4):
                B(f"v_pk_add_f32 {v(T+2*q,2)}, {v(T+2*q,2)}, s[82:83]")
            for q in range(8):
                B(f"v_rcp_f32 v{T+q}, v{T+q}")
            for q in range(4):
                B(f"v_pk_mul_f32 {v(T+2*q,2)}, {v(T+2*q,2)}, {v(d+2*q,2)}")
            for q in range(4):
                B(f"v_cvt_pk_bf16_f32 v{T+8+q}, v{T+2*q}, v{T+2*q+1}")
            B(f"s_add_u32 s75, s{97+sl}, {tp*4096}")
            B(f"buffer_store_dwordx4 {v(T+8,4)}, v1, {srd(SWS)}, s75 offen sc1 ;@Hst")
            out.append(B.l)
    return out


GATE = """v_cvt_pk_bf16_f32 v12, v12, v12
v_lshlrev_b32 v12, 16, v12
v_mul_f32 v12, 0xbfb8aa3b, v12
v_exp_f32 v12, v12
v_add_f32 v12, 1.0, v12
v_rcp_f32 v12, v12
v_cvt_pk_bf16_f32 v12, v12, v12
v_lshlrev_b32 v12, 16, v12
v_sub_f32 v14, 1.0, v12
v_cvt_pk_bf16_f32 v14, v14, v14
v_lshlrev_b32 v14, 16, v14
v_mov_b32 v13, v12
v_mov_b32 v15, v14"""


def cv_reads(r):
    s = r & 1
    out = []
    for p in range(8):
        out.append(f"ds_read_b128 {v(CV_U[s]+4*p,4)}, v10 offset:{512*p + 64*r}")
        for h in range(2):
            out.append(f"ds_read_b64 {v(CV_H[s]+4*p+2*h,2)}, v11 offset:{64*(7-r) + 512*p + 8*h}")
    return out


def cv_mfmas(r):
    s = r & 1
    out = []
    for Ap in range(8):
        for p in range(Ap + 1):
            d = CV_ACC + 4 * Ap
            c = "0" if (r == 0 and p == 0) else v(d, 4)
            out.append(f"v_mfma_f32_16x16x32_bf16 {v(d,4)}, {v(CV_U[s]+4*p,4)}, {v(CV_H[s]+4*(Ap-p),4)}, {c}")
    return out


def weave(mf, reads, extras):
    out = []
    n = len(extras)
    pos = {}
    for k in range(n):
        pos.setdefault(((2 * k + 1) * len(mf)) // (2 * n), []).append(extras[k])
    for i, m in enumerate(mf):
        out.append(m)
        if i < len(reads): out.append(reads[i])
        out.extend(pos.get(i, []))
    out.extend(reads[len(mf):])
    return out


def suffix(A, busy):
    nm = "b" if busy else "i"
    wi = 0
    pre = poll_check("A" + nm, "s60", "v2")
    if busy:
        dm = []
        pre += "\ns_lshl_b32 s83, s70, 1\ns_add_u32 s84, s83, 4096\ns_add_u32 s85, s70, 8\ns_add_u32 s86, s70, 4"
        for base, so, sr, f in ((9152 + 64, "s85", SH, ""), (448, "s83", SWS, " sc1"), (9152 + 4224 + 64, "s86", SH, ""),
                                (4576 + 448, "s84", SWS, " sc1")):
            for j in range(4):
                dm.append((f"s_add_u32 m0, s69, {base}\ns_nop 0\n" if j == 0 else "") +
                          f"buffer_load_dwordx4 v1, {srd(sr)}, {so} offen offset:{1024*j}{f} lds ;@UH")
        g1_stage(A, 8, dm[:8], dm[8:], pre, waits="PA")
    else:
        w8 = [wload(i) for i in range(8)]; wi = 8
        g1_stage(A, 8, w8[:4], w8[4:], pre, waits="PA")
    w9 = [wload(i) for i in range(wi, wi + P["w9"])]; wi += P["w9"]
    g1_stage(A, 9, w9[:len(w9) // 2], w9[len(w9) // 2:])
    A("s_barrier")
    ex = [
        "v_mul_u32_u24 v136, 205, v0\nv_lshrrev_b32 v136, 11, v136\nv_mul_u32_u24 v137, 10, v136",
        "v_sub_u32 v137, v0, v137\nv_mul_u32_u24 v136, 1280, v136\nv_lshl_add_u32 v136, v137, 4, v136",
        "s_mul_i32 s80, s4, 81920\ns_mul_i32 s81, s5, 160\ns_add_u32 s80, s80, s81\ns_mul_i32 s81, s6, 10240\ns_add_u32 s80, s80, s81",
        f"v_add_u32 v2, s80, v136\ns_mul_i32 s87, s6, 1280\ns_add_u32 s87, s87, {QIMG}",
    ]
    for ro in (0, 4, 32, 36):
        ex.append(f"s_mov_b32 exec_lo, -1\ns_mov_b32 exec_hi, 0xff\ns_add_u32 m0, s87, {ro*160}\ns_mov_b32 s82, {ro*1280}\n"
                  f"buffer_load_dwordx4 v2, {srd(SX)}, s82 offen lds ;@Q\ns_mov_b64 exec, -1")
    for g in range(4):
        ex.append(f"s_add_u32 s{76+g}, s6, {g+1}\ns_and_b32 s{76+g}, s{76+g}, 3\ns_lshl_b32 s{76+g}, s{76+g}, 10")
    A(mix(g1_mfmas(1), [], ex))
    A(stamp(9))
    A("s_mov_b32 s80, 0xbfb8aa3b\ns_mov_b32 s81, 0xbfb8aa3b\ns_mov_b32 s82, 1.0\ns_mov_b32 s83, 1.0")
    sb = silu_blocks()
    for k, blk in enumerate(sb):
        if busy and k == 5:
            A("@wait UH")
            A(spread(blk, cv_reads(0), 0, 24))
        else:
            A(blk)
    A(GATE)
    A(f"s_lshl_b32 s84, s4, 7\ns_lshl_b32 s85, s5, 4\ns_add_u32 s84, s84, s85\ns_lshl_b32 s85, s6, 2\ns_add_u32 s84, s84, s85\ns_add_u32 s84, s84, {FB_OFF}")
    A(stamp(10))
    hi = 0
    if busy:
        for r in range(8):
            A("s_waitcnt lgkmcnt(0)")
            ex = []
            if r == P["flagB"]: ex.append("@wait Hst\n" + flag_store("v7", "s84"))
            if r == P["pollB"]: ex.append(poll_load("PB", "v3"))
            if r == P["chkB"]: ex.append("@wait PB\n" + poll_check("B" + nm, "s61", "v3"))
            nw = min(P["cw"][r], 60 - wi) if r < 7 else 60 - wi
            ex += [wload(i) for i in range(wi, wi + nw)]; wi += nw
            if r >= P["chkB"]:
                ex += [hload(i) for i in range(hi, hi + P["chf"][r])]; hi += P["chf"][r]
            A(weave(cv_mfmas(r), cv_reads(r + 1) if r < 7 else [], ex))
            if r in (0, 3, 5): A(stamp({0: 11, 3: 12, 5: 13}[r]))
        assert hi <= 20
    else:
        D = P["idle_depth"]
        k = 0
        while wi < 60:
            A(wload(wi)); wi += 1; k += 1
            if k == D:
                A("@wait Hst\n" + flag_store("v7", "s84"))
            elif k > D:
                A(f"s_waitcnt vmcnt({D})")
        A(stamp(12))
        A(poll_load("PB", "v3") + "\n@wait PB\n" + poll_check("B" + nm, "s61", "v3"))
        A(stamp(13))
        for i in range(P["idle_pre"]): A(hload(i))
        hi = P["idle_pre"]
    A(stamp(14))
    ev = {}
    fill = []
    if busy:
        fill.append(f"v_lshlrev_b32 v8, 3, v0\ns_add_u32 s85, s70, {Y_OFF}")
        for Ap in range(8):
            d = CV_ACC + 4 * Ap
            fill.append(f"v_cvt_pk_bf16_f32 v{d}, v{d}, v{d+1}\nv_cvt_pk_bf16_f32 v{d+1}, v{d+2}, v{d+3}\n"
                        f"buffer_store_dwordx2 {v(d,2)}, v8, {srd(SWS)}, s85 offen offset:{512*Ap} sc1 ;@Yst")
        ev.setdefault(P["flagC"], []).append(
            f"s_lshl_b32 s84, s5, 9\ns_lshl_b32 s85, s91, 2\ns_add_u32 s84, s84, s85\ns_add_u32 s84, s84, {FC_OFF}\n@wait Yst\n"
            + flag_store("v6", "s84"))
    fill += [hload(i) for i in range(hi, 48)]
    ev.setdefault(P["pollC"], []).append(poll_load("PC", "v4"))
    ydma = ["@wait PC\n" + poll_check("C" + nm, "s60", "v4"),
            "v_lshrrev_b32 v3, 3, v0\nv_lshlrev_b32 v3, 12, v3\nv_and_b32 v4, 7, v0\nv_lshl_add_u32 v3, v4, 4, v3\n"
            f"s_mul_i32 s82, s5, {80*4096}\ns_lshl_b32 s83, s4, 7\ns_add_u32 s82, s82, s83\ns_lshl_b32 s83, s6, 15\ns_add_u32 s82, s82, s83\n"
            f"s_add_u32 s82, s82, {Y_OFF}\ns_lshl_b32 s83, s6, 10\ns_add_u32 m0, s83, {YIMG}\ns_add_u32 s84, s82, {32*4096}\n"
            f"buffer_load_dwordx4 v3, {srd(SWS)}, s82 offen sc1 lds ;@Y\ns_add_u32 m0, s83, {YIMG + 4096}\ns_cmp_ge_u32 s6, 2\n"
            f"buffer_load_dwordx4 v3, {srd(SWS)}, s84 offen sc1 lds ;@Y\ns_cbranch_scc1 L_noy{nm}\n"
            f"s_add_u32 m0, s83, {YIMG + 8192}\ns_add_u32 s84, s82, {64*4096}\n"
            f"buffer_load_dwordx4 v3, {srd(SWS)}, s84 offen sc1 lds ;@opt\nL_noy{nm}:"]
    ev.setdefault(P["chkC"], []).extend(ydma)
    fin = [f"s_mul_i32 s84, s6, 15360\nv_add_u32 v8, s84, v1"]
    for g in range(3):
        for dt in range(5):
            fin.append(f"ds_read_b128 {v(16 + (g*5+dt)*4, 4)}, v8 offset:{RED + g*5120 + dt*1024}")
    for dt in range(5):
        fin.append(f"ds_read_b64_tr_b16 {v(76+2*dt,2)}, v10 offset:{dt*2048}")
    for dt in range(5):
        fin.append(f"ds_read_b64 {v(86+2*dt,2)}, v11 offset:{dt*32}")
    addr = ["v_lshrrev_b32 v10, 2, v0\nv_lshlrev_b32 v10, 7, v10\nv_and_b32 v11, 3, v0\nv_lshl_add_u32 v10, v11, 3, v10",
            f"s_lshl_b32 s84, s6, 5\ns_add_u32 s84, s84, {YIMG}\nv_add_u32 v10, s84, v10",
            "v_and_b32 v208, 15, v0\nv_lshrrev_b32 v209, 2, v208\nv_lshlrev_b32 v209, 1, v209\nv_and_b32 v210, 1, v208",
            "v_or_b32 v209, v209, v210\nv_and_b32 v210, 2, v208\nv_lshl_add_u32 v208, v210, 4, v209",
            "v_mul_u32_u24 v208, 160, v208\nv_lshrrev_b32 v209, 4, v0\nv_lshl_add_u32 v208, v209, 3, v208\nv_add_u32 v11, s87, v208"]
    fill += addr
    cnt = 0
    for g in range(4):
        acc = G2_ACC[g & 1]
        if g >= 1:
            pa = G2_ACC[(g - 1) & 1]
            wr = [f"s_mul_i32 s84, s{76+g-1}, 15\ns_add_u32 s84, s84, {RED + (g-1)*5120}\nv_add_u32 v8, s84, v1"]
            wr += [f"ds_write_b128 v8, {v(pa+4*dt,4)} offset:{dt*1024}" for dt in range(5)]
            fill = fill[:2] + wr + fill[2:]
        for i in range(12):
            if g == 3 and i == P["bar"]:
                A(fill); fill = list(fin)
                A("s_waitcnt vmcnt(0) lgkmcnt(0)\ns_barrier")
                A(stamp(19))
            A(ev.get((g, i), []))
            A(f"@wait H{12*g+i}" + (f" W{5*i+4}" if g == 0 else ""))
            for dt in range(5):
                d = acc + 4 * dt
                c = "0" if i == 0 else v(d, 4)
                A(f"v_mfma_f32_16x16x32_bf16 {v(d,4)}, {a(4*(5*i+dt),4)}, {v(hf_reg(12*g+i),4)}, {c}")
                cnt += 1
                if (cnt % 2 == 0 or (g == 3 and i >= P["bar"])) and fill: A(fill.pop(0))
        A(stamp(15 + g))
    if P["bar"] >= 12:
        A(fill); fill = list(fin)
        A("s_waitcnt vmcnt(0) lgkmcnt(0)\ns_barrier")
        A(stamp(19))
    A(fill)
    A(f"s_or_b32 s84, s4, s6\ns_cmp_lg_u32 s84, 0\ns_cbranch_scc1 L_noec{nm}")
    A(f"s_lshl_b32 s84, s5, 7\ns_add_u32 s84, s84, {EC_OFF}\n" + flag_store("v6", "s84") + f"\nL_noec{nm}:")
    A(f"s_or_b32 s84, s5, s6\ns_cmp_lg_u32 s84, 0\ns_cbranch_scc1 L_noer{nm}")
    A(f"s_lshl_b32 s84, s4, 7\ns_add_u32 s84, s84, {ER_OFF}\n" + flag_store("v7", "s84") + f"\nL_noer{nm}:")
    A("s_waitcnt lgkmcnt(0)")
    acc = G2_ACC[1]
    for dt in range(5):
        for hf in range(2):
            b = 16 + dt * 4 + 2 * hf
            o = acc + dt * 4 + 2 * hf
            A(f"v_pk_add_f32 {v(b,2)}, {v(b,2)}, {v(b+20,2)}")
            A(f"v_pk_add_f32 {v(o,2)}, {v(o,2)}, {v(b+40,2)}")
            A(unpack(100, 76 + 2 * dt + hf)); A(unpack(102, 86 + 2 * dt + hf))
            A(f"v_pk_add_f32 {v(b,2)}, {v(b,2)}, {v(o,2)}")
            A("v_pk_mul_f32 v[100:101], v[100:101], v[102:103]")
            A(f"v_pk_mul_f32 {v(b,2)}, {v(b,2)}, v[14:15]")
            A(f"v_pk_fma_f32 {v(b,2)}, v[100:101], v[12:13], {v(b,2)}")
            A(f"v_cvt_pk_bf16_f32 v{104+2*dt+hf}, v{b}, v{b+1}")
        A(f"ds_write_b64 v11, {v(104+2*dt,2)} offset:{dt*32}")
    A("v_add_u32 v8, s87, v1\ns_waitcnt lgkmcnt(0)")
    A(stamp(20))
    for i, ro in enumerate((0, 4, 32, 36)):
        A(f"ds_read_b128 {v(116+4*i,4)}, v8 offset:{ro*160}")
    A("s_mov_b32 exec_lo, -1\ns_mov_b32 exec_hi, 0xff")
    for i, ro in enumerate((0, 4, 32, 36)):
        A(f"s_waitcnt lgkmcnt({3-i})\ns_mov_b32 s82, {ro*1280}")
        A(f"buffer_store_dwordx4 {v(116+4*i,4)}, v2, {srd(SOUT)}, s82 offen{P['osc']}")
    if STAMPS:
        A("s_mov_b64 exec, -1\ns_waitcnt vmcnt(0)")
        A(stamp(21))
        A("s_memrealtime s[92:93]\ns_waitcnt lgkmcnt(0)\nv_writelane_b32 v9, s92, 31")
        A("s_getreg_b32 s92, hwreg(HW_REG_XCC_ID)\nv_writelane_b32 v9, s92, 29")
        A(f"s_lshl_b32 s92, s2, 2\ns_add_u32 s92, s92, s6\ns_lshl_b32 s92, s92, 7\ns_add_u32 s92, s92, {STAMP_OFF}")
        A(f"v_lshlrev_b32 v2, 2, v0\ns_mov_b64 exec, 0xffffffff\nbuffer_store_dword v9, v2, {srd(SWS)}, s92 offen")
    if P["echo"] >= 0:
        A("s_waitcnt vmcnt(0)")
        A(stamp(21))
        A(f"s_memtime s[92:93]\ns_waitcnt lgkmcnt(0)\ns_sub_u32 s100, s100, s101\ns_mov_b32 s101, s92\nL_echo{nm}:\ns_memtime s[92:93]\ns_waitcnt lgkmcnt(0)\n"
          f"s_sub_u32 s92, s92, s101\ns_cmp_lt_u32 s92, s100\ns_cbranch_scc1 L_echo{nm}")
    A("s_endpgm")


def build():
    global SPINS
    SPINS = []
    pre = Out(); prefix(pre)
    if P["pst"]:
        nl = []; k = 1; skip = 0
        for i, x in enumerate(pre.l):
            if x.startswith("s_memtime s[92:93]") and pre.l[i+1].startswith("s_waitcnt"): skip = 3
            if skip: skip -= 1; continue
            nl.append(x)
            if (x.startswith("buffer_") or x.startswith("s_cselect_b32 s13")) and k < 29 and "opt" not in x:
                nl += stamp(k).split("\n"); k += 1
        pre.l = nl
    global INSUF
    INSUF = True
    sb = Out(); suffix(sb, True)
    si = Out(); suffix(si, False)
    rb_ = resolve_waits(pre.l + ["@@"] + sb.l)
    ri_ = resolve_waits(pre.l + ["@@"] + si.l)
    kb, ki = rb_.index("@@"), ri_.index("@@")
    assert rb_[:kb] == ri_[:ki]
    A = Asm()
    for x in rb_[:kb] + rb_[kb + 1:] + ["L_idle:", "s_nop 7", "s_nop 3"] + ri_[ki + 1:]: A(x.split(";@")[0])
    for s in SPINS: A(s)
    A("L_end:\ns_endpgm")
    kn = NAME + "_kernel"
    txt = header([f"; @launch grid=(256,1,1) block=(256,1,1) lds={LDS_TOTAL}"])
    txt += '.amdgcn_target "amdgcn-amd-amdhsa--gfx950"\n.text\n'
    txt += kernel_text(kn, A.text())
    txt += '.section .rodata,"a"\n' + desc(kn, 512, 256)
    return txt


if __name__ == "__main__":
    out = sys.argv[1] if len(sys.argv) > 1 else f"cdna_kernels/{NAME}.s"
    for kv in sys.argv[2:]:
        if kv == "stamps":
            STAMPS = True
        else:
            k_, v_ = kv.split("=", 1)
            P[k_] = eval(v_)
    open(out, "w").write(build())
```
